```python
import torch

def _softmax(x, axis=-1):
    return torch.softmax(x, dim=axis)

def _gelu(x):
    return torch.nn.functional.gelu(x, approximate='tanh')

def _silu(x):
    return torch.nn.functional.silu(x)

def _sigmoid(x):
    return torch.sigmoid(x)

def _layernorm(x, axis=-1, eps=1e-05):
    m = x.mean(dim=axis, keepdim=True)
    v = x.var(dim=axis, keepdim=True, unbiased=False)
    return (x - m) / torch.sqrt(v + eps)

def _scatter_add(tgt, idx, src, axis=0):
    return tgt.clone().index_add_(axis, idx, src)

def _segment_sum(src, seg, n):
    out = torch.zeros((n,) + src.shape[1:], dtype=src.dtype)
    return out.index_add_(0, seg, src)

def _pad(x, pw):
    flat = tuple((v for pair in reversed(pw) for v in pair))
    return torch.nn.functional.pad(x, flat)
kernel_name = 'interleave_layers__memory_aug_recurrent_mem_tr__geglu_ffn__prompt'

def setup_inputs():

    _w = lambda a: (lambda t: t.to(torch.bfloat16) if t.is_floating_point() else t)(torch.as_tensor(a))

    def _A_setup():
        B, S, Dm = (1, 2048, 512)
        H, Dh = (32, 128)
        M, seg = (8, 32)
        seg = min(seg, S)
        S = S // seg * seg
        return {'x': _w((lambda *s: torch.randn(*s, dtype=torch.bfloat16) * 0.05)(B, S, Dm)), 'mem0': _w((lambda *s: torch.randn(*s, dtype=torch.bfloat16) * 0.8)(B, M, Dm)), 'Wq': _w((lambda *s: torch.randn(*s, dtype=torch.bfloat16) * 0.8)(Dm, H, Dh) * Dm ** (-0.5)), 'Wk': _w((lambda *s: torch.randn(*s, dtype=torch.bfloat16) * 0.8)(Dm, H, Dh) * Dm ** (-0.5)), 'Wv': _w((lambda *s: torch.randn(*s, dtype=torch.bfloat16) * 0.8)(Dm, H, Dh) * Dm ** (-0.5)), 'Wo': _w((lambda *s: torch.randn(*s, dtype=torch.bfloat16) * 0.8)(H, Dh, Dm) * (H * Dh) ** (-0.5)), 'seg_len': seg}
    _A_in = _A_setup()

    def _B_setup():
        B, S, D, F = (1, 2048, 512, 1792)
        return {'x': _w((lambda *s: torch.randn(*s, dtype=torch.bfloat16) * 0.05)(B, S, D)), 'w_gate': _w((lambda *s: torch.randn(*s, dtype=torch.bfloat16) * 0.05)(D, F)), 'w_up': _w((lambda *s: torch.randn(*s, dtype=torch.bfloat16) * 0.05)(D, F)), 'w_down': _w((lambda *s: torch.randn(*s, dtype=torch.bfloat16) * 0.05)(F, D))}
    _B_in = _B_setup()
    return {'A_x': _A_in['x'], 'A_mem0': _A_in['mem0'], 'A_Wq': _A_in['Wq'], 'A_Wk': _A_in['Wk'], 'A_Wv': _A_in['Wv'], 'A_Wo': _A_in['Wo'], 'A_seg_len': _A_in['seg_len'], 'B_x': _B_in['x'], 'B_w_gate': _B_in['w_gate'], 'B_w_up': _B_in['w_up'], 'B_w_down': _B_in['w_down']}

def reference(A_x, A_mem0, A_Wq, A_Wk, A_Wv, A_Wo, A_seg_len, B_x, B_w_gate, B_w_up, B_w_down):

    def _A_ref(x, mem0, Wq, Wk, Wv, Wo, seg_len):
        B, S, Dm = x.shape
        H, Dh = (Wq.shape[1], Wq.shape[2])
        M = mem0.shape[1]
        scale = Dh ** (-0.5)
        n_seg = S // seg_len
        L = M + seg_len
        idx = torch.arange(L)
        mask = (idx[:, None] < M) | (idx[:, None] >= idx[None, :])
        mem = mem0
        outs = []
        for s in range(n_seg):
            xs = x[:, s * seg_len:(s + 1) * seg_len, :].clone()
            h = torch.concatenate([mem, xs], axis=1)
            q = torch.einsum('btd,dhe->bhte', h, Wq)
            k = torch.einsum('btd,dhe->bhte', h, Wk)
            v = torch.einsum('btd,dhe->bhte', h, Wv)
            scores = torch.einsum('bhqe,bhke->bhqk', q, k) * scale
            scores = torch.where(mask[None, None], scores, -1000000000.0)
            p = _softmax(scores, axis=-1)
            o = torch.einsum('bhqk,bhke->bhqe', p, v)
            o = torch.einsum('bhte,hed->btd', o, Wo)
            mem = o[:, :M, :].clone()
            outs.append(o[:, M:, :])
        return torch.concatenate(outs, axis=1)

    def _B_ref(x, w_gate, w_up, w_down):
        return _gelu(x @ w_gate) * (x @ w_up) @ w_down
    x = A_x
    x = x + _A_ref(_layernorm(x, axis=-1), A_mem0, A_Wq, A_Wk, A_Wv, A_Wo, A_seg_len)
    x = x + _B_ref(_layernorm(x, axis=-1), B_w_gate, B_w_up, B_w_down)
    x = x + _A_ref(_layernorm(x, axis=-1), A_mem0, A_Wq, A_Wk, A_Wv, A_Wo, A_seg_len)
    x = x + _B_ref(_layernorm(x, axis=-1), B_w_gate, B_w_up, B_w_down)
    return x
```

```python
import re

_REG = re.compile(r'^(v|a|s)(\d+)$')
_RNG = re.compile(r'^(v|a|s)\[(\d+):(\d+)\]$')

TRANS = ('v_exp_f32', 'v_log_f32', 'v_rcp_f32', 'v_rsq_f32', 'v_sqrt_f32', 'v_sin_f32', 'v_cos_f32')


def regs_of(op):
    op = op.strip()
    if op.startswith('-'):
        op = op[1:]
    if op.startswith('abs(') and op.endswith(')'):
        op = op[4:-1]
    m = _REG.match(op)
    if m:
        return [(m.group(1), int(m.group(2)))]
    m = _RNG.match(op)
    if m:
        return [(m.group(1), i) for i in range(int(m.group(2)), int(m.group(3)) + 1)]
    if op == 'vcc':
        return [('vcc', 0)]
    return []


class Asm:
    def __init__(self):
        self.lines = []
        self.ws = 0
        self.lastw = {}
        self.mfma_c = {}
        self.store_data = {}
        self.nlab = 0
        self.ninstr = 0

    def label(self, name):
        self.lines.append(f'{name}:')

    def newlabel(self, base='L'):
        self.nlab += 1
        return f'{base}_{self.nlab}'

    def comment(self, s):
        self.lines.append(f'    ; {s}')

    def _nop(self, n):
        while n > 0:
            k = min(n, 16)
            self.lines.append(f'    s_nop {k - 1}')
            self.ws += k
            self.ninstr += 1
            n -= k

    def flush(self):
        need = 0
        for r, (kind, idx, _) in self.lastw.items():
            d = {'mfma': 8, 'valu': 2, 'trans': 2, 'vsgpr': 5}.get(kind, 0)
            need = max(need, d - (self.ws - idx - 1))
        for r, idx in self.mfma_c.items():
            need = max(need, 3 - (self.ws - idx - 1))
        for r, idx in self.store_data.items():
            need = max(need, 2 - (self.ws - idx - 1))
        if need > 0:
            self._nop(need)

    def __call__(self, text):
        text = text.strip()
        parts = text.split(None, 1)
        mn = parts[0]
        rest = parts[1] if len(parts) > 1 else ''
        ops = [o.strip() for o in rest.split(',')] if rest else []
        cleaned = []
        for o in ops:
            toks = o.split()
            cleaned.append(toks[0] if toks else '')
        ops = cleaned
        reads, writes = [], []
        kind = None
        srcC = []
        is_dpp = '_dpp' in mn or 'quad_perm' in text or 'row_' in text
        if mn.startswith('v_mfma'):
            kind = 'mfma'
            writes = regs_of(ops[0])
            ab = regs_of(ops[1]) + regs_of(ops[2])
            srcC = regs_of(ops[3])
            reads = ab + srcC
        elif mn.startswith('v_permlane'):
            kind = 'valu'
            writes = regs_of(ops[0]) + regs_of(ops[1])
            reads = list(writes)
        elif mn.startswith('v_cmp'):
            kind = 'vsgpr'
            writes = regs_of(ops[0])
            for o in ops[1:]:
                reads += regs_of(o)
        elif mn.startswith('v_readfirstlane') or mn.startswith('v_readlane'):
            kind = 'vsgpr'
            writes = regs_of(ops[0])
            for o in ops[1:]:
                reads += regs_of(o)
        elif mn.startswith('v_'):
            kind = 'trans' if mn in TRANS else 'valu'
            writes = regs_of(ops[0])
            for o in ops[1:]:
                reads += regs_of(o)
            if mn.startswith('v_fmac') or mn.startswith('v_pk_fmac'):
                reads += writes
            if mn.startswith('v_cndmask') and len(ops) == 3:
                reads += [('vcc', 0)]
        elif mn.startswith('ds_read') or mn.startswith('global_load') or mn.startswith('buffer_load'):
            kind = 'load'
            writes = regs_of(ops[0])
            for o in ops[1:]:
                reads += regs_of(o)
        elif mn.startswith('ds_write') or mn.startswith('global_store') or mn.startswith('buffer_store'):
            kind = 'store'
            for o in ops:
                reads += regs_of(o)
        elif mn.startswith('global_atomic'):
            kind = 'store'
            for o in ops:
                reads += regs_of(o)
            if 'sc0' in text:
                writes = regs_of(ops[0])
        elif mn.startswith('s_'):
            kind = 'salu'
        need = 0

        def dist(idx):
            return self.ws - idx - 1

        is_vmem = mn.startswith('global_') or mn.startswith('buffer_')
        if kind in ('mfma', 'valu', 'trans', 'vsgpr', 'load', 'store'):
            for r in reads:
                lw = self.lastw.get(r)
                if lw is None:
                    continue
                pk, idx, extra = lw
                d = 0
                if pk == 'mfma':
                    if kind == 'mfma':
                        if r in srcC:
                            d = 0 if extra == (mn,) + tuple(srcC) else 8
                            if r in regs_of(ops[1]) + regs_of(ops[2]):
                                d = 8
                        else:
                            d = 8
                    else:
                        d = 8
                elif pk in ('valu', 'trans'):
                    if kind == 'mfma':
                        d = 2
                    elif mn.startswith('v_permlane') or is_dpp:
                        d = 2
                    elif mn.startswith('v_readfirstlane') or mn.startswith('v_readlane'):
                        d = 1
                    elif pk == 'trans' and kind in ('valu', 'vsgpr'):
                        d = 1
                elif pk == 'vsgpr':
                    if is_vmem:
                        d = 5
                    elif kind in ('valu', 'trans', 'vsgpr', 'mfma'):
                        d = 2
                need = max(need, d - dist(idx))
            if kind in ('valu', 'trans', 'load'):
                for r in writes:
                    lw = self.lastw.get(r)
                    if lw is not None and lw[0] == 'mfma':
                        need = max(need, 8 - dist(lw[1]))
                    if kind != 'load':
                        if r in self.mfma_c:
                            need = max(need, 3 - dist(self.mfma_c[r]))
                        if r in self.store_data:
                            need = max(need, 2 - dist(self.store_data[r]))
        if need > 0:
            self._nop(need)
        self.lines.append('    ' + text)
        self.ninstr += 1
        idx = self.ws
        if mn == 's_nop':
            self.ws += int(ops[0]) + 1
        else:
            self.ws += 1
        for r in writes:
            if kind == 'mfma':
                self.lastw[r] = ('mfma', idx, (mn,) + tuple(writes))
            elif kind in ('valu', 'trans', 'vsgpr'):
                self.lastw[r] = (kind, idx, None)
            else:
                self.lastw.pop(r, None)
        if kind == 'mfma':
            for r in srcC:
                self.mfma_c[r] = idx
        if kind == 'store' and ('x4' in mn or 'x3' in mn or 'b128' in mn):
            for r in reads:
                if r[0] in ('v', 'a'):
                    self.store_data[r] = idx

    def text(self):
        return '\n'.join(self.lines) + '\n'
```

```python
import sys
from asmlib import Asm

LAG = int(sys.argv[2]) if len(sys.argv) > 2 else 10
import os
NSTEP = int(os.environ.get("NSTEP", 64 + LAG))
TMO = int(os.environ.get("TMO", 400000))

KV_RDY = 0x0
MEM_RDY = 0x10000
X1_RDY = 0x20000
X2_RDY = 0x28000
PF = 0x2C000
DONE = 0x2D000
CSLICE = 0x30000
CPART = 0x40000
ZERO_END = 0x140000
MEMKV = 0x200000
X1 = 0x1A00000
X2 = 0x1E00000
BPART = 0x2000000
QKV = 0x3000000

KA = dict(x=0, mem0=8, wq=16, wk=24, wv=32, wo=40, wg=64, wu=72, wd=80, out=88, dbg=96, ws=104)

a = Asm()
E = a


def v(i, n=1):
    return f'v{i}' if n == 1 else f'v[{i}:{i + n - 1}]'


def ag(i, n=1):
    return f'a{i}' if n == 1 else f'a[{i}:{i + n - 1}]'


def s(i, n=1):
    return f's{i}' if n == 1 else f's[{i}:{i + n - 1}]'


WS = 's[4:5]'
XIN = 's[6:7]'
OUT = 's[8:9]'
DBG = 's[10:11]'


def timeout_exit(code):
    E(f'v_mov_b32 v126, {64 + 4 * code}')
    E(f'v_mov_b32 v127, {0x100 + code}')
    E(f'global_store_dword v126, v127, {DBG}')
    E('s_waitcnt vmcnt(0)')
    E('s_endpgm')


def poll_begin():
    L = a.newlabel('Lpoll')
    E('s_mov_b32 s90, 0')
    a.flush()
    a.label(L)
    return L


def poll_end(L, code):
    Ld = a.newlabel('Lpd')
    E('s_cmp_eq_u64 s[40:41], 0')
    E(f's_cbranch_scc1 {Ld}')
    E('s_add_u32 s90, s90, 1')
    E(f's_cmp_lt_u32 s90, {TMO}')
    a.flush()
    E(f's_cbranch_scc1 {L}')
    timeout_exit(code)
    a.label(Ld)


DUMP = int(os.environ.get("DUMP", 0))
def dump(slot, r0, n):
    if not DUMP:
        return
    E('s_lshl_b32 s23, s21, 2')
    E('s_add_u32 s23, s23, s20')
    E('s_lshl_b32 s23, s23, 13')
    E(f's_add_u32 s23, s23, {0xA000000 + slot * 0x100000}')
    E('v_add_u32 v127, s23, v7')
    for k in range(n // 4):
        E(f'global_store_dwordx4 v127, v[{r0 + 4 * k}:{r0 + 4 * k + 3}], {WS} offset:{k * 1024}')
    E('s_waitcnt vmcnt(0)')


def barrier():
    E('s_waitcnt lgkmcnt(0)')
    E('s_barrier')


def gen_init():
    a.lines.append('.globl init_kernel\n.p2align 8\n.type init_kernel,@function\ninit_kernel:')
    nwg = ZERO_END // 4096
    E(f's_cmp_ge_u32 s2, {nwg}')
    E('s_cbranch_scc1 Linit_done')
    E(f's_load_dwordx2 s[4:5], s[0:1], {KA["ws"]}')
    E('s_lshl_b32 s3, s2, 12')
    E('v_lshlrev_b32 v1, 4, v0')
    E('v_add_u32 v1, s3, v1')
    E('v_mov_b32 v4, 0')
    E('v_mov_b32 v5, 0')
    E('v_mov_b32 v6, 0')
    E('v_mov_b32 v7, 0')
    E('s_waitcnt lgkmcnt(0)')
    E('global_store_dwordx4 v1, v[4:7], s[4:5]')
    E('s_waitcnt vmcnt(0)')
    a.label('Linit_done')
    E('s_endpgm')
    return nwg


def lane_consts():
    E('v_and_b32 v1, 15, v0')
    E('v_lshrrev_b32 v2, 4, v0')
    E('v_lshlrev_b32 v7, 4, v0')


def frag_bases(region):
    for q in range(4):
        E(f'v_add_u32 v124, {4 * q}, v2')
        E('v_xor_b32 v124, v124, v1')
        E('v_lshlrev_b32 v124, 4, v124')
        E('v_lshl_add_u32 v124, v1, 10, v124')
        E(f'v_add_u32 v{3 + q}, {region}, v124')


def load_wqkv():
    STR = 272
    E('s_lshl_b32 s23, s20, 7')
    E('v_add_u32 v24, s23, v2')
    E('v_lshlrev_b32 v25, 13, v24')
    E('s_lshl_b32 s24, s21, 8')
    E('v_lshl_add_u32 v25, v1, 4, v25')
    E('v_add_u32 v25, s24, v25')
    E(f'v_mul_u32_u24 v26, {STR}, v24')
    E('v_lshl_add_u32 v26, v1, 4, v26')
    E('v_lshrrev_b32 v27, 2, v1')
    E('v_lshl_add_u32 v27, v2, 3, v27')
    E(f'v_mul_u32_u24 v27, {STR}, v27')
    E('v_and_b32 v28, 3, v1')
    E('v_lshlrev_b32 v28, 3, v28')
    E('v_add_u32 v27, v27, v28')
    E('s_lshl_b32 s23, s20, 6')
    E('v_add_u32 v27, s23, v27')
    for q in range(1, 4):
        E(f'v_add_u32 v{27 + q}, {4 * 32 * STR * q}, v27')
    for mi, (ptr, dst) in enumerate((('s[12:13]', ('a', 0)), ('s[14:15]', ('a', 128)), ('s[16:17]', ('v', 128)))):
        for b in range(4):
            for i in range(8):
                ii = b * 8 + i
                E(f'v_add_u32 v31, {ii * 4 * 8192}, v25')
                E(f'global_load_dwordx4 v[{32 + 4 * i}:{35 + 4 * i}], v31, {ptr}')
            for i in range(8):
                ii = b * 8 + i
                E(f's_waitcnt vmcnt({7 - i})')
                E(f'ds_write_b128 v26, v[{32 + 4 * i}:{35 + 4 * i}] offset:{ii * 4 * STR}')
        barrier()
        for T in range(2):
            for ks in range(16):
                base = 27 + ks // 4
                off = (ks % 4) * 32 * STR + T * 32
                r = dst[1] + (T * 16 + ks) * 4
                p = dst[0]
                E(f'ds_read_b64_tr_b16 {p}[{r}:{r + 1}], v{base} offset:{off}')
                E(f'ds_read_b64_tr_b16 {p}[{r + 2}:{r + 3}], v{base} offset:{off + 4 * STR}')
        barrier()


def wfrag(m, T, ks):
    r = (T * 16 + ks) * 4
    if m == 0:
        return f'a[{r}:{r + 3}]'
    if m == 1:
        return f'a[{128 + r}:{128 + r + 3}]'
    return f'v[{128 + r}:{128 + r + 3}]'


def layernorm32(src, voff_sgpr, region, rowbase):
    E('v_lshrrev_b32 v24, 3, v0')
    E('s_lshl_b32 s23, s20, 3')
    E('v_add_u32 v24, s23, v24')
    E('v_and_b32 v25, 7, v0')
    E('v_lshlrev_b32 v26, 10, v24')
    E('v_lshl_add_u32 v26, v25, 4, v26')
    E(f'v_add_u32 v26, {voff_sgpr}, v26')
    for i in range(8):
        E(f'global_load_dwordx4 v[{28 + 4 * i}:{31 + 4 * i}], v26, {src} offset:{i * 128} sc1')
    E('v_and_b32 v27, 7, v24')
    E('v_xor_b32 v27, v27, v25')
    E('v_lshlrev_b32 v27, 4, v27')
    E('v_lshl_add_u32 v27, v24, 10, v27')
    E('v_bfe_u32 v25, v24, 3, 1')
    E('v_lshl_add_u32 v27, v25, 7, v27')
    E(f'v_add_u32 v27, {region + rowbase * 1024}, v27')
    E('v_xor_b32 v25, 128, v27')
    for i in range(8):
        E(f's_waitcnt vmcnt({7 - i})')
        for j in range(4):
            src_r = 28 + 4 * i + j
            d = 60 + 8 * i + 2 * j
            E(f'v_lshlrev_b32 v{d}, 16, v{src_r}')
            E(f'v_and_b32 v{d + 1}, 0xffff0000, v{src_r}')
    E('v_add_f32 v124, v60, v61')
    E('v_add_f32 v125, v62, v63')
    for k in range(4, 64, 2):
        E(f'v_add_f32 v124, v124, v{60 + k}')
        E(f'v_add_f32 v125, v125, v{61 + k}')
    E('v_add_f32 v124, v124, v125')

    def red8(r):
        E(f'v_add_f32_dpp v{r}, v{r}, v{r} quad_perm:[1,0,3,2] row_mask:0xf bank_mask:0xf')
        E(f'v_add_f32_dpp v{r}, v{r}, v{r} quad_perm:[2,3,0,1] row_mask:0xf bank_mask:0xf')
        E(f'v_add_f32_dpp v{r}, v{r}, v{r} row_half_mirror row_mask:0xf bank_mask:0xf')
    red8(124)
    E('v_mul_f32 v124, 0x3b000000, v124')
    for k in range(64):
        E(f'v_sub_f32 v{60 + k}, v{60 + k}, v124')
    E('v_mul_f32 v124, v60, v60')
    E('v_mul_f32 v125, v61, v61')
    for k in range(2, 64, 2):
        E(f'v_fmac_f32 v124, v{60 + k}, v{60 + k}')
        E(f'v_fmac_f32 v125, v{61 + k}, v{61 + k}')
    E('v_add_f32 v124, v124, v125')
    red8(124)
    E('v_mov_b32 v125, 0x3727c5ac')
    E('v_fmac_f32 v125, 0x3b000000, v124')
    E('v_rsq_f32 v125, v125')
    for i in range(8):
        for j in range(4):
            d = 60 + 8 * i + 2 * j
            E(f'v_mul_f32 v{d}, v{d}, v125')
            E(f'v_mul_f32 v{d + 1}, v{d + 1}, v125')
            E(f'v_cvt_pk_bf16_f32 v{28 + 4 * i + j}, v{d}, v{d + 1}')
        E(f'ds_write_b128 v{27 if i % 2 == 0 else 25}, v[{28 + 4 * i}:{31 + 4 * i}] offset:{(i >> 1) * 256}')


def xlane_reduce(op, r, t):
    E(f'v_mov_b32 v{t}, v{r}')
    E(f'v_permlane16_swap_b32 v{r}, v{t}')
    E(f'{op} v{r}, v{r}, v{t}')
    E(f'v_mov_b32 v{t}, v{r}')
    E(f'v_permlane32_swap_b32 v{r}, v{t}')
    E(f'{op} v{r}, v{r}, v{t}')


SC_LOG2E = 0x3e0293ee


def softmax12(base, t0):
    E(f'v_max3_f32 v{t0}, v{base}, v{base + 1}, v{base + 2}')
    for k in range(3, 11, 2):
        E(f'v_max3_f32 v{t0}, v{t0}, v{base + k}, v{base + k + 1}')
    E(f'v_max_f32 v{t0}, v{t0}, v{base + 11}')
    xlane_reduce('v_max_f32', t0, t0 + 1)
    E(f's_mov_b32 s23, {SC_LOG2E}')
    for k in range(12):
        E(f'v_sub_f32 v{base + k}, v{base + k}, v{t0}')
    for k in range(12):
        E(f'v_mul_f32 v{base + k}, s23, v{base + k}')
    for k in range(12):
        E(f'v_exp_f32 v{base + k}, v{base + k}')
    E(f'v_add_f32 v{t0}, v{base}, v{base + 1}')
    for k in range(2, 12):
        E(f'v_add_f32 v{t0}, v{t0}, v{base + k}')
    xlane_reduce('v_add_f32', t0, t0 + 1)
    E(f'v_rcp_f32 v{t0}, v{t0}')
    for k in range(12):
        E(f'v_mul_f32 v{base + k}, v{base + k}, v{t0}')


WOF = 0
MEMT = 131072
XS = 147456
XO_REL = 12288


def gen_chain():
    a.label('Lchain')
    E(f's_load_dwordx2 s[12:13], s[0:1], {KA["wq"]}')
    E(f's_load_dwordx2 s[14:15], s[0:1], {KA["wk"]}')
    E(f's_load_dwordx2 s[16:17], s[0:1], {KA["wv"]}')
    E(f's_load_dwordx2 s[18:19], s[0:1], {KA["wo"]}')
    E(f's_load_dwordx2 s[48:49], s[0:1], {KA["mem0"]}')
    E('s_waitcnt lgkmcnt(0)')
    lane_consts()
    load_wqkv()
    STG = 131072
    STR = 1040
    E('s_lshl_b32 s23, s21, 17')
    E('s_lshl_b32 s24, s20, 12')
    E('s_add_u32 s23, s23, s24')
    E('v_add_u32 v24, s23, v7')
    E(f's_mul_i32 s24, s20, {4 * STR}')
    E('v_add_u32 v25, s24, v7')
    E(f'v_add_u32 v25, {STG}, v25')
    E('v_lshrrev_b32 v26, 2, v1')
    E('v_lshl_add_u32 v26, v2, 2, v26')
    E(f'v_mul_u32_u24 v26, {STR}, v26')
    E('v_and_b32 v27, 3, v1')
    E('v_lshl_add_u32 v26, v27, 3, v26')
    E('s_lshl_b32 s24, s20, 8')
    E('v_add_u32 v26, s24, v26')
    E(f'v_add_u32 v26, {STG}, v26')
    E('s_lshl_b32 s24, s20, 13')
    E('v_add_u32 v27, s24, v7')
    E('v_add_u32 v28, 65536, v27')
    for c in range(8):
        ks, hf = c // 2, c % 2
        E(f'v_add_u32 v29, {c * 16 * 1024}, v24')
        for i in range(4):
            E(f'global_load_dwordx4 v[{32 + 4 * i}:{35 + 4 * i}], v29, s[18:19] offset:{i * 1024}')
        for i in range(4):
            E(f's_waitcnt vmcnt({3 - i})')
            E(f'ds_write_b128 v25, v[{32 + 4 * i}:{35 + 4 * i}] offset:{i * STR}')
        barrier()
        for i in range(8):
            E(f'ds_read_b64_tr_b16 v[{48 + 2 * i}:{49 + 2 * i}], v26 offset:{i * 32}')
        for i in range(8):
            E(f's_waitcnt lgkmcnt({7 - i})')
            dreg = 27 if ks < 2 else 28
            E(f'ds_write_b64 v{dreg}, v[{48 + 2 * i}:{49 + 2 * i}] offset:{(ks % 2) * 32768 + i * 1024 + 8 * hf}')
        barrier()
    frag_bases(MEMT)
    E('v_lshrrev_b32 v24, 2, v0')
    E('v_and_b32 v25, 3, v0')
    E('v_lshrrev_b32 v26, 1, v25')
    E('v_xor_b32 v26, v26, v24')
    E('v_lshlrev_b32 v26, 4, v26')
    E('v_and_b32 v27, 1, v25')
    E('v_lshlrev_b32 v27, 3, v27')
    E('v_lshl_add_u32 v27, v24, 10, v27')
    E('s_lshl_b32 s23, s20, 8')
    E('v_add_u32 v27, s23, v27')
    E(f'v_add_u32 v27, {MEMT}, v27')
    E('v_or_b32 v8, v27, v26')
    E(f'v_add_u32 v21, {XS}, v7')
    E('s_mul_i32 s23, s20, 3072')
    E('v_add_u32 v9, s23, v21')
    E('s_lshl_b32 s23, s20, 10')
    E('v_add_u32 v20, s23, v21')
    E(f'v_add_u32 v20, {XO_REL}, v20')
    E('v_mov_b32 v10, 0xfffffff0')
    E('s_lshl_b32 s23, s20, 18')
    E('s_lshl_b32 s24, s21, 10')
    E('s_add_u32 s23, s23, s24')
    E(f's_add_u32 s23, s23, {CPART}')
    E('v_add_u32 v11, s23, v7')
    E('v_lshrrev_b32 v24, 2, v1')
    E('v_and_b32 v25, 3, v1')
    E('v_lshl_add_u32 v26, v24, 4, v25')
    E('s_lshl_b32 s23, s20, 2')
    E('v_add_u32 v26, s23, v26')
    E('v_lshlrev_b32 v26, 4, v26')
    E('v_lshl_add_u32 v26, v2, 10, v26')
    E('s_lshl_b32 s24, s21, 15')
    E(f's_add_u32 s24, s24, {CPART}')
    E('v_add_u32 v12, s24, v26')
    E('v_add_u32 v26, s23, v25')
    E('v_lshl_add_u32 v27, v26, 2, v24')
    E('v_lshlrev_b32 v27, 4, v27')
    E('s_lshl_b32 s24, s21, 10')
    E(f's_add_u32 s24, s24, {CSLICE}')
    E('v_add_u32 v13, s24, v27')
    E('v_and_b32 v27, 7, v26')
    E('v_lshlrev_b32 v27, 10, v27')
    E('v_lshl_add_u32 v27, v24, 3, v27')
    E('s_lshl_b32 s24, s21, 5')
    E('v_add_u32 v27, s24, v27')
    E('global_load_dwordx2 v[28:29], v27, s[48:49]')
    E('v_cmp_le_u32 s[50:51], 8, v26')
    E('s_lshl_b32 s23, s20, 13')
    E(f's_add_u32 s23, s23, {CSLICE}')
    E('v_add_u32 v14, s23, v7')
    E('v_add_u32 v15, 4096, v14')
    E('s_lshl_b32 s23, s20, 13')
    E('v_add_u32 v22, s23, v7')
    E('v_add_u32 v23, 65536, v22')
    E('s_waitcnt vmcnt(0)')
    E('v_lshlrev_b32 v16, 16, v28')
    E('v_and_b32 v17, 0xffff0000, v28')
    E('v_lshlrev_b32 v18, 16, v29')
    E('v_and_b32 v19, 0xffff0000, v29')
    E('v_cmp_le_u32 s[44:45], 8, v1')
    E('v_lshrrev_b32 v24, 1, v2')
    E('v_lshrrev_b32 v25, 3, v1')
    E('v_cmp_eq_u32 s[46:47], v24, v25')
    for r in range(80, 112):
        E(f'v_mov_b32 v{r}, 0')
    E('v_lshrrev_b32 v24, 2, v0')
    E('v_and_b32 v24, 7, v24')
    E('v_lshlrev_b32 v24, 10, v24')
    E('v_and_b32 v25, 3, v0')
    E('v_lshl_add_u32 v24, v25, 3, v24')
    E('s_lshl_b32 s23, s20, 8')
    E('v_add_u32 v24, s23, v24')
    for i in range(8):
        E(f'global_load_dwordx2 v[{48 + 2 * i}:{49 + 2 * i}], v24, s[48:49] offset:{i * 32}')
    for i in range(8):
        E(f's_waitcnt vmcnt({7 - i})')
        E(f'v_xor_b32 v25, {i << 5}, v8')
        E(f'ds_write_b64 v25, v[{48 + 2 * i}:{49 + 2 * i}]')
    E('s_mov_b32 s30, 0')
    E('s_lshl_b32 s52, s21, 2')
    E('s_add_u32 s52, s52, s20')
    E('s_mul_i32 s53, s21, 24576')
    E('s_lshl_b32 s23, s20, 10')
    E('s_add_u32 s53, s53, s23')
    E(f's_add_u32 s53, s53, {QKV}')

    def kv_fetch(chain, segreg, part):
        l = chain - 1
        kb = 80 + 8 * l
        vb = 96 + 8 * l
        if part == 'flag':
            E(f's_add_u32 s23, {segreg}, {l * 64}')
            E('s_lshl_b32 s23, s23, 7')
            E('s_add_u32 s23, s23, s52')
            E('s_lshl_b32 s23, s23, 2')
            E(f'v_mov_b32 v124, s23')
            L = poll_begin()
            E(f'global_load_dword v125, v124, {WS} offset:{KV_RDY} sc1')
            E('s_waitcnt vmcnt(0)')
            E('v_cmp_ne_u32 s[40:41], 1, v125')
            poll_end(L, 1)
        else:
            E(f's_add_u32 s23, {segreg}, {l * 64}')
            E(f's_mul_i32 s23, s23, {32 * 24576}')
            E('s_add_u32 s23, s23, s53')
            E('v_add_u32 v124, s23, v7')
            if part == 'K':
                E('v_add_u32 v124, 8192, v124')
                E(f'global_load_dwordx4 v[{kb}:{kb + 3}], v124, {WS} sc1')
                E('v_add_u32 v124, 4096, v124')
                E(f'global_load_dwordx4 v[{kb + 4}:{kb + 7}], v124, {WS} sc1')
            else:
                E('s_lshl_b32 s24, s20, 10')
                E('v_add_u32 v124, s24, v124')
                E('v_add_u32 v124, 16384, v124')
                E(f'global_load_dwordx4 v[{vb}:{vb + 3}], v124, {WS} sc1')
                E(f'global_load_dwordx4 v[{vb + 4}:{vb + 7}], v124, {WS} offset:1024 sc1')

    E('s_mov_b32 s35, 0')
    kv_fetch(1, 's35', 'flag')
    kv_fetch(1, 's35', 'K')
    kv_fetch(1, 's35', 'V')
    a.flush()
    a.label('Lchain_step')
    barrier()
    def rd(ks):
        E(f'ds_read_b128 v[{48 + 4 * (ks % 8)}:{51 + 4 * (ks % 8)}], v{3 + ks % 4} offset:{(ks // 4) * 256}')
    for ks in range(8):
        rd(ks)
    for ks in range(16):
        E(f's_waitcnt lgkmcnt({min(7, 15 - ks)})')
        mf = f'v[{48 + 4 * (ks % 8)}:{51 + 4 * (ks % 8)}]'
        for m in range(2):
            for T in range(2):
                acc = f'v[{24 + 8 * m + 4 * T}:{27 + 8 * m + 4 * T}]'
                E(f'v_mfma_f32_16x16x32_bf16 {acc}, {wfrag(m, T, ks)}, {mf}, {acc if ks else 0}')
        for T in range(2):
            acc = f'v[{40 + 4 * T}:{43 + 4 * T}]'
            E(f'v_mfma_f32_16x16x32_bf16 {acc}, {mf}, {wfrag(2, T, ks)}, {acc if ks else 0}')
        if ks + 8 < 16:
            rd(ks + 8)
    for T in range(2):
        for j in range(2):
            E(f'v_cvt_pk_bf16_f32 v{112 + 2 * T + j}, v{24 + 4 * T + 2 * j}, v{25 + 4 * T + 2 * j}')
            E(f'v_cvt_pk_bf16_f32 v{116 + 2 * T + j}, v{32 + 4 * T + 2 * j}, v{33 + 4 * T + 2 * j}')
            E(f'v_cvt_pk_bf16_f32 v{120 + 2 * T + j}, v{40 + 4 * T + 2 * j}, v{41 + 4 * T + 2 * j}')
    E('s_lshl_b32 s23, s30, 5')
    E('s_add_u32 s23, s23, s21')
    E('s_lshl_b32 s23, s23, 13')
    E('s_lshl_b32 s24, s20, 10')
    E('s_add_u32 s23, s23, s24')
    E(f's_add_u32 s23, s23, {MEMKV}')
    E('v_add_u32 v124, s23, v7')
    E('v_add_u32 v125, 4096, v124')
    E(f'global_store_dwordx4 v124, v[116:119], {WS} sc1')
    E(f'global_store_dwordx4 v125, v[120:123], {WS} sc1')
    E('s_waitcnt vmcnt(2)')
    for c in range(2):
        for kt in range(2):
            kb = 80 + 8 * c + 4 * kt
            d = 48 + 8 * c + 4 * kt
            E(f'v_mfma_f32_16x16x32_bf16 v[{d}:{d + 3}], v[{kb}:{kb + 3}], v[112:115], 0')
    E('v_mfma_f32_16x16x32_bf16 v[64:67], v[116:119], v[112:115], 0')
    for k in range(8):
        E(f'v_cndmask_b32 v{68 + k}, v{48 + k}, v{56 + k}, s[44:45]')
    for k in range(4):
        E(f'v_mov_b32 v{76 + k}, v{64 + k}')
    for b in range(3):
        E(f'ds_write_b128 v9, v[{68 + 4 * b}:{71 + 4 * b}] offset:{b * 1024}')
    barrier()
    for half in range(2):
        for ww in range(2):
            for b in range(3):
                r = 24 + 12 * ww + 4 * b
                E(f'ds_read_b128 v[{r}:{r + 3}], v21 offset:{(2 * half + ww) * 3072 + b * 1024}')
        E('s_waitcnt lgkmcnt(0)')
        for k in range(12):
            if half == 0:
                E(f'v_add_f32 v{68 + k}, v{24 + k}, v{36 + k}')
            else:
                E(f'v_add_f32 v{68 + k}, v{68 + k}, v{24 + k}')
                E(f'v_add_f32 v{68 + k}, v{68 + k}, v{36 + k}')
    E('v_mov_b32 v124, 0xf149f2ca')
    for k in range(4):
        E(f'v_cndmask_b32 v{76 + k}, v124, v{76 + k}, s[46:47]')
    dump(0, 68, 12)
    softmax12(68, 124)
    dump(1, 68, 12)
    for j in range(4):
        E(f'v_cvt_pk_bf16_f32 v{24 + j}, v{68 + 2 * j}, v{69 + 2 * j}')
    for j in range(2):
        E(f'v_cvt_pk_bf16_f32 v{56 + j}, v{76 + 2 * j}, v{77 + 2 * j}')
    for j in range(4):
        E(f'v_cndmask_b32 v{48 + j}, v{24 + j}, 0, s[44:45]')
        E(f'v_cndmask_b32 v{52 + j}, 0, v{24 + j}, s[44:45]')
    for et in range(2):
        o = f'v[{24 + 4 * et}:{27 + 4 * et}]'
        E(f'v_mfma_f32_16x16x32_bf16 {o}, v[{96 + 4 * et}:{99 + 4 * et}], v[48:51], 0')
        E(f'v_mfma_f32_16x16x32_bf16 {o}, v[{104 + 4 * et}:{107 + 4 * et}], v[52:55], {o}')
        E(f'v_mfma_f32_16x16x16_bf16 {o}, v[{120 + 2 * et}:{121 + 2 * et}], v[56:57], {o}')
    for et in range(2):
        for j in range(2):
            E(f'v_cvt_pk_bf16_f32 v{32 + 2 * et + j}, v{24 + 4 * et + 2 * j}, v{25 + 4 * et + 2 * j}')
    dump(2, 24, 8)
    dump(3, 96, 16)
    dump(4, 48, 12)
    E('ds_write_b128 v20, v[32:35]')
    barrier()
    for ks in range(4):
        E(f'ds_read_b128 v[{48 + 4 * ks}:{51 + 4 * ks}], v21 offset:{XO_REL + ks * 1024}')

    def rdwo(i):
        st = 24 if i % 2 == 0 else 64
        for ks in range(4):
            E(f'ds_read_b128 v[{st + 4 * ks}:{st + 3 + 4 * ks}], v{22 + ks // 2} offset:{(ks % 2) * 32768 + i * 1024}')
    rdwo(0)
    E('s_add_u32 s35, s30, 1')
    Ls1 = a.newlabel('Lsk')
    E('s_cmp_ge_u32 s35, 64')
    E(f's_cbranch_scc1 {Ls1}')
    kv_fetch(1, 's35', 'flag')
    kv_fetch(1, 's35', 'K')
    kv_fetch(1, 's35', 'V')
    a.flush()
    a.label(Ls1)
    Ls2 = a.newlabel('Lsk')
    E(f's_sub_u32 s36, s35, {LAG}')
    E('s_cmp_ge_u32 s36, 64')
    E(f's_cbranch_scc1 {Ls2}')
    kv_fetch(2, 's36', 'flag')
    kv_fetch(2, 's36', 'K')
    kv_fetch(2, 's36', 'V')
    a.flush()
    a.label(Ls2)
    E('s_mul_hi_u32 s23, s30, 0x11111112')
    E('s_mul_i32 s23, s23, 15')
    E('s_sub_u32 s31, s30, s23')
    E('s_add_u32 s31, s31, 1')
    for i in range(8):
        if i + 1 < 8:
            rdwo(i + 1)
            E('s_waitcnt lgkmcnt(4)')
        else:
            E('s_waitcnt lgkmcnt(0)')
        st = 24 if i % 2 == 0 else 64
        acc = 40 + 4 * (i % 2)
        for ks in range(4):
            E(f'v_mfma_f32_16x16x32_bf16 v[{acc}:{acc + 3}], v[{st + 4 * ks}:{st + 3 + 4 * ks}], v[{48 + 4 * ks}:{51 + 4 * ks}], {f"v[{acc}:{acc + 3}]" if ks else 0}')
        for j in range(4):
            E(f'v_and_or_b32 v{acc + j}, v{acc + j}, v10, s31')
        E(f'v_add_u32 v124, {i * 32768}, v11')
        E(f'global_store_dwordx4 v124, v[{acc}:{acc + 3}], {WS}')
    L = poll_begin()
    for i in range(8):
        E(f'v_add_u32 v124, {i * 4096}, v12')
        E(f'global_load_dwordx4 v[{48 + 4 * i}:{51 + 4 * i}], v124, {WS} sc1')
    E('s_waitcnt vmcnt(0)')
    E('v_and_b32 v124, v48, v49')
    E('v_or_b32 v125, v48, v49')
    for k in range(50, 80, 2):
        E(f'v_and_b32 v124, v124, v{k}')
        E(f'v_or3_b32 v125, v125, v{k}, v{k + 1}')
        E(f'v_and_b32 v124, v124, v{k + 1}')
    E('v_and_b32 v124, 15, v124')
    E('v_and_b32 v125, 15, v125')
    E('v_cmp_ne_u32 s[40:41], s31, v124')
    E('v_cmp_ne_u32 s[42:43], s31, v125')
    E('s_or_b64 s[40:41], s[40:41], s[42:43]')
    poll_end(L, 2)
    E('s_lshl_b32 s23, s30, 7')
    E('s_add_u32 s23, s23, s52')
    E('s_lshl_b32 s23, s23, 2')
    E('v_mov_b32 v124, s23')
    E('v_mov_b32 v125, 1')
    E('v_add_u32 v124, %d, v124' % MEM_RDY)
    E(f'global_store_dword v124, v125, {WS} sc1')
    for j in range(4):
        E(f'v_add_f32 v{24 + j}, v{48 + j}, v{52 + j}')
        for i in range(2, 8):
            E(f'v_add_f32 v{24 + j}, v{24 + j}, v{48 + 4 * i + j}')
    for j in range(4):
        xlane_reduce('v_add_f32', 24 + j, 28 + j)
    E('s_add_u32 s32, s30, 1')
    for j in range(4):
        E(f'v_cvt_pk_bf16_f32 v{24 + j}, v{24 + j}, v{24 + j}')
        E(f'v_and_b32 v{24 + j}, 0xffff0000, v{24 + j}')
    Lo = a.newlabel('Lov')
    E(f's_cmp_gt_u32 s32, {LAG}')
    E(f's_cbranch_scc1 {Lo}')
    for j in range(4):
        E(f'v_cndmask_b32 v{24 + j}, v{24 + j}, v{16 + j}, s[50:51]')
    a.flush()
    a.label(Lo)
    for j in range(4):
        E(f'v_or_b32 v{24 + j}, s32, v{24 + j}')
    E('s_mov_b64 exec, 0xffff')
    E(f'global_store_dwordx4 v13, v[24:27], {WS}')
    E('s_mov_b64 exec, -1')
    E(f's_cmp_ge_u32 s32, {NSTEP}')
    E('s_cbranch_scc1 Lchain_done')
    L = poll_begin()
    for i in range(8):
        E(f'global_load_dwordx4 v[{48 + 4 * i}:{51 + 4 * i}], v{14 + i // 4}, {WS} offset:{(i % 4) * 1024} sc1')
    E('s_waitcnt vmcnt(0)')
    E('v_and_b32 v124, v48, v49')
    E('v_or_b32 v125, v48, v49')
    for k in range(50, 80, 2):
        E(f'v_and_b32 v124, v124, v{k}')
        E(f'v_or3_b32 v125, v125, v{k}, v{k + 1}')
        E(f'v_and_b32 v124, v124, v{k + 1}')
    E('v_and_b32 v124, 0xffff, v124')
    E('v_and_b32 v125, 0xffff, v125')
    E('v_cmp_ne_u32 s[40:41], s32, v124')
    E('v_cmp_ne_u32 s[42:43], s32, v125')
    E('s_or_b64 s[40:41], s[40:41], s[42:43]')
    poll_end(L, 3)
    E('s_mov_b32 s23, 0x07060302')
    for i in range(8):
        E(f'v_perm_b32 v{24 + 2 * i}, v{49 + 4 * i}, v{48 + 4 * i}, s23')
        E(f'v_perm_b32 v{25 + 2 * i}, v{51 + 4 * i}, v{50 + 4 * i}, s23')
        E(f'v_xor_b32 v124, {i << 5}, v8')
        E(f'ds_write_b64 v124, v[{24 + 2 * i}:{25 + 2 * i}]')
    E('s_mov_b32 s30, s32')
    a.flush()
    E('s_branch Lchain_step')
    a.label('Lchain_done')
    E('s_waitcnt vmcnt(0)')
    E('s_endpgm')


def a_tables():
    items = []
    for sgi in range(64):
        items.append((sgi - 8, 0, sgi))
        items.append((sgi + LAG - 4, 1, sgi))
    items.sort()
    tabs = [[], [], []]
    for i, (k, l, sgi) in enumerate(items):
        tabs[i % 3].append(l * 64 + sgi)
    n = max(len(t) for t in tabs)
    return tabs, n


def gen_A():
    tabs, n = a_tables()
    a.label('LroleA')
    E(f's_load_dwordx2 s[12:13], s[0:1], {KA["wq"]}')
    E(f's_load_dwordx2 s[14:15], s[0:1], {KA["wk"]}')
    E(f's_load_dwordx2 s[16:17], s[0:1], {KA["wv"]}')
    E('s_waitcnt lgkmcnt(0)')
    lane_consts()
    load_wqkv()
    XN = 0
    frag_bases(XN)
    E('s_getpc_b64 s[54:55]')
    a.label('Lpc_A')
    E('s_add_u32 s54, s54, Ltab_A - Lpc_A')
    E('s_addc_u32 s55, s55, 0')
    E('s_sub_u32 s23, s22, 1')
    E(f's_mul_i32 s23, s23, {4 * 64}')
    E('s_add_u32 s54, s54, s23')
    E('s_addc_u32 s55, s55, 0')
    E('s_mov_b32 s30, 0')
    E('s_mul_i32 s53, s21, 24576')
    E('s_lshl_b32 s23, s20, 10')
    E('s_add_u32 s53, s53, s23')
    E(f's_add_u32 s53, s53, {QKV}')
    E('s_lshl_b32 s52, s21, 2')
    E('s_add_u32 s52, s52, s20')
    a.flush()
    a.label('LA_item')
    E('s_lshl_b32 s23, s30, 2')
    E('s_load_dword s31, s[54:55], s23')
    E('s_waitcnt lgkmcnt(0)')
    E('s_cmp_ge_u32 s31, 128')
    E('s_cbranch_scc1 LA_done')
    E('s_and_b32 s32, s31, 63')
    E('s_lshl_b32 s33, s32, 15')
    E('s_cmp_ge_u32 s31, 64')
    E('s_cbranch_scc1 LA_l2')
    layernorm32(XIN, 's33', XN, 0)
    a.flush()
    E('s_branch LA_ln_done')
    a.label('LA_l2')
    E('s_lshr_b32 s23, s32, 1')
    E('s_lshl_b32 s23, s23, 9')
    E(f's_add_u32 s23, s23, {X2_RDY}')
    E('v_lshlrev_b32 v124, 3, v0')
    E('v_add_u32 v124, s23, v124')
    L = poll_begin()
    E(f'global_load_dwordx2 v[24:25], v124, {WS} sc1')
    E('s_waitcnt vmcnt(0)')
    E('v_and_b32 v24, v24, v25')
    E('v_cmp_ne_u32 s[40:41], 1, v24')
    poll_end(L, 4)
    E(f's_add_u32 s33, s33, {X2}')
    layernorm32(WS, 's33', XN, 0)
    a.flush()
    a.label('LA_ln_done')
    barrier()

    def rd(ks):
        for rt in range(2):
            r = 72 + 8 * (ks % 4) + 4 * rt
            E(f'ds_read_b128 v[{r}:{r + 3}], v{3 + ks % 4} offset:{rt * 16384 + (ks // 4) * 256}')
    for ks in range(4):
        rd(ks)
    for ks in range(16):
        E(f's_waitcnt lgkmcnt({min(6, 2 * (15 - ks))})')
        for rt in range(2):
            r = 72 + 8 * (ks % 4) + 4 * rt
            mf = f'v[{r}:{r + 3}]'
            for m in range(2):
                for T in range(2):
                    ar = 24 + 16 * m + 8 * rt + 4 * T
                    acc = f'v[{ar}:{ar + 3}]'
                    E(f'v_mfma_f32_16x16x32_bf16 {acc}, {wfrag(m, T, ks)}, {mf}, {acc if ks else 0}')
            for T in range(2):
                ar = 56 + 8 * rt + 4 * T
                acc = f'v[{ar}:{ar + 3}]'
                E(f'v_mfma_f32_16x16x32_bf16 {acc}, {mf}, {wfrag(2, T, ks)}, {acc if ks else 0}')
        if ks + 4 < 16:
            rd(ks + 4)
    E(f's_mul_i32 s23, s31, {32 * 24576}')
    E('s_add_u32 s23, s23, s53')
    E('v_add_u32 v124, s23, v7')
    for m in range(2):
        for rt in range(2):
            d = 72 + 8 * m + 4 * rt
            for T in range(2):
                for j in range(2):
                    ar = 24 + 16 * m + 8 * rt + 4 * T + 2 * j
                    E(f'v_cvt_pk_bf16_f32 v{d + 2 * T + j}, v{ar}, v{ar + 1}')
            E(f'v_add_u32 v125, {m * 8192 + rt * 4096}, v124')
            E(f'global_store_dwordx4 v125, v[{d}:{d + 3}], {WS} sc1')
    E('s_lshl_b32 s24, s20, 10')
    E('v_add_u32 v124, s24, v124')
    E('v_add_u32 v124, 16384, v124')
    for T in range(2):
        d = 88 + 4 * T
        for rt in range(2):
            for j in range(2):
                ar = 56 + 8 * rt + 4 * T + 2 * j
                E(f'v_cvt_pk_bf16_f32 v{d + 2 * rt + j}, v{ar}, v{ar + 1}')
        E(f'global_store_dwordx4 v124, v[{d}:{d + 3}], {WS} offset:{T * 1024} sc1')
    E('s_waitcnt vmcnt(0)')
    E('s_lshl_b32 s23, s31, 7')
    E('s_add_u32 s23, s23, s52')
    E('s_lshl_b32 s23, s23, 2')
    E('v_mov_b32 v124, s23')
    E('v_mov_b32 v125, 1')
    E(f'global_store_dword v124, v125, {WS} offset:{KV_RDY} sc1')
    E('s_add_u32 s30, s30, 1')
    E('s_barrier')
    a.flush()
    E('s_branch LA_item')
    a.label('LA_done')
    E('s_waitcnt vmcnt(0)')
    E('s_endpgm')
    return tabs


def team_consts():
    E('s_lshl_b32 s23, s56, 21')
    E(f's_add_u32 s23, s23, {BPART}')
    E('s_lshl_b32 s24, s20, 19')
    E('s_add_u32 s24, s24, s23')
    E('s_lshl_b32 s25, s21, 11')
    E('s_add_u32 s24, s24, s25')
    E('v_add_u32 v11, s24, v7')
    E('s_lshl_b32 s24, s21, 16')
    E('s_add_u32 s24, s24, s23')
    E('s_lshr_b32 s25, s20, 1')
    E('s_lshl_b32 s25, s25, 10')
    E('s_add_u32 s24, s24, s25')
    E('s_and_b32 s25, s20, 1')
    E('s_lshl_b32 s25, s25, 9')
    E('s_add_u32 s24, s24, s25')
    E('v_lshrrev_b32 v24, 5, v0')
    E('v_and_b32 v25, 31, v0')
    E('v_lshlrev_b32 v25, 4, v25')
    E('v_lshl_add_u32 v25, v24, 11, v25')
    E('v_add_u32 v12, s24, v25')
    E('s_lshr_b32 s25, s20, 1')
    E('s_lshl_b32 s25, s25, 5')
    E('v_lshl_add_u32 v26, v24, 4, v1')
    E('v_add_u32 v26, s25, v26')
    E('v_lshlrev_b32 v26, 10, v26')
    E('v_and_b32 v27, 1, v2')
    E('s_and_b32 s25, s20, 1')
    E('s_lshl_b32 s25, s25, 4')
    E('s_lshl_b32 s24, s21, 5')
    E('s_add_u32 s25, s25, s24')
    E('v_lshl_add_u32 v26, v27, 3, v26')
    E('v_add_u32 v13, s25, v26')
    E('v_cmp_eq_u32 s[58:59], 1, v24')
    E('s_lshl_b32 s23, s56, 7')
    E(f's_add_u32 s57, s23, {PF}')
    E('s_lshl_b32 s23, s56, 9')
    E(f's_add_u32 s60, s23, {DONE}')


def wait_done(code):
    E('v_lshlrev_b32 v124, 3, v0')
    E('v_add_u32 v124, s60, v124')
    E('s_sub_u32 s23, s34, 1')
    L = poll_begin()
    E(f'global_load_dwordx2 v[126:127], v124, {WS} sc1')
    E('s_waitcnt vmcnt(0)')
    E('v_min_u32 v126, v126, v127')
    E('v_cmp_gt_u32 s[40:41], s23, v126')
    poll_end(L, code)


def publish_and_reduce(nprod, code, producer_mask_label=None):
    E('s_waitcnt vmcnt(0)')
    E('s_barrier')
    E('s_lshl_b32 s23, s21, 2')
    E('s_add_u32 s23, s23, s57')
    E('v_mov_b32 v124, s23')
    E('v_mov_b32 v125, s34')
    E(f'global_store_dword v124, v125, {WS}')
    if producer_mask_label:
        a.flush()
        a.label(producer_mask_label)
    E('v_and_b32 v124, 31, v0')
    E(f'v_min_u32 v124, {nprod - 1}, v124')
    E('v_lshlrev_b32 v124, 2, v124')
    E('v_add_u32 v124, s57, v124')
    L = poll_begin()
    E(f'global_load_dword v125, v124, {WS} sc1')
    E('s_waitcnt vmcnt(0)')
    E('v_cmp_gt_u32 s[40:41], s34, v125')
    poll_end(L, code)
    nl = nprod // 2
    for k in range(8):
        E(f'v_mov_b32 v{24 + k}, 0')
    for b in range(0, nl, 8):
        cnt = min(8, nl - b)
        for i in range(cnt):
            E(f'v_add_u32 v124, {(b + i) * 4096}, v12')
            E(f'global_load_dwordx4 v[{48 + 4 * i}:{51 + 4 * i}], v124, {WS} sc1')
        for i in range(cnt):
            E(f's_waitcnt vmcnt({cnt - 1 - i})')
            for j in range(4):
                r = 48 + 4 * i + j
                E(f'v_lshlrev_b32 v124, 16, v{r}')
                E(f'v_and_b32 v125, 0xffff0000, v{r}')
                E(f'v_add_f32 v{24 + 2 * j}, v{24 + 2 * j}, v124')
                E(f'v_add_f32 v{25 + 2 * j}, v{25 + 2 * j}, v125')
    E('s_lshl_b32 s23, s52, 2')
    E('s_add_u32 s23, s23, s60')
    E('v_mov_b32 v124, s23')
    E('v_mov_b32 v125, s34')
    E(f'global_store_dword v124, v125, {WS}')
    for k in range(8):
        E(f'v_mov_b32 v{32 + k}, v{24 + k}')
        E(f'v_permlane32_swap_b32 v{24 + k}, v{32 + k}')
        E(f'v_add_f32 v{24 + k}, v{24 + k}, v{32 + k}')
    for k in range(4):
        E(f'v_cndmask_b32 v{24 + k}, v{24 + k}, v{28 + k}, s[58:59]')


def partial_store(i, accs):
    for rtp in range(2):
        for h2 in range(2):
            ar = accs[2 * rtp + h2]
            for j in range(2):
                E(f'v_cvt_pk_bf16_f32 v{104 + 4 * rtp + 2 * h2 + j}, v{ar + 2 * j}, v{ar + 2 * j + 1}')
    E(f'v_add_u32 v124, {i * 65536}, v11')
    E(f'global_store_dwordx4 v124, v[104:107], {WS}')
    E(f'global_store_dwordx4 v124, v[108:111], {WS} offset:1024')


def gen_B():
    a.label('LroleB')
    E(f's_load_dwordx2 s[18:19], s[0:1], {KA["wo"]}')
    E('s_waitcnt lgkmcnt(0)')
    lane_consts()
    STR = 1040
    E('s_lshl_b32 s23, s21, 17')
    E('s_lshl_b32 s24, s20, 15')
    E('s_add_u32 s23, s23, s24')
    E('v_add_u32 v24, s23, v7')
    E(f's_mul_i32 s24, s20, {32 * STR}')
    E('v_add_u32 v25, s24, v7')
    for b in range(4):
        E(f'v_add_u32 v26, {b * 8192}, v24')
        E(f'v_add_u32 v27, {b * 8192 + 4096}, v24')
        for i in range(8):
            E(f'global_load_dwordx4 v[{32 + 4 * i}:{35 + 4 * i}], v{26 + i // 4}, s[18:19] offset:{(i % 4) * 1024}')
        for i in range(8):
            E(f's_waitcnt vmcnt({7 - i})')
            E(f'ds_write_b128 v25, v[{32 + 4 * i}:{35 + 4 * i}] offset:{(b * 8 + i) * STR}')
    barrier()
    E('v_lshrrev_b32 v26, 2, v1')
    E('v_lshl_add_u32 v26, v2, 2, v26')
    E(f'v_mul_u32_u24 v26, {STR}, v26')
    E('v_and_b32 v27, 3, v1')
    E('v_lshl_add_u32 v26, v27, 3, v26')
    E('s_lshl_b32 s24, s20, 8')
    E('v_add_u32 v26, s24, v26')
    E(f'v_add_u32 v27, {64 * STR}, v26')
    for ni in range(8):
        for ks in range(4):
            r = 128 + (ni * 4 + ks) * 4
            off = (ks % 2) * 32 * STR + ni * 32
            E(f'ds_read_b64_tr_b16 v[{r}:{r + 1}], v{26 + ks // 2} offset:{off}')
            E(f'ds_read_b64_tr_b16 v[{r + 2}:{r + 3}], v{26 + ks // 2} offset:{off + 16 * STR}')
    barrier()
    E('s_sub_u32 s61, s22, 4')
    E('s_mov_b32 s56, s61')
    E('s_lshl_b32 s52, s21, 2')
    E('s_add_u32 s52, s52, s20')
    team_consts()
    E('s_and_b32 s23, s20, 1')
    E('s_lshl_b32 s23, s23, 4')
    E('v_add_u32 v14, s23, v1')
    E('v_lshlrev_b32 v24, 2, v2')
    E('v_sub_u32 v14, v14, v24')
    E('v_lshrrev_b32 v24, 1, v2')
    E('v_cmp_eq_u32 s[46:47], s61, v24')
    E('s_lshl_b32 s23, s20, 12')
    E('v_add_u32 v20, s23, v7')
    E('s_mov_b32 s34, 1')
    a.flush()
    a.label('LB_item')
    E('s_sub_u32 s35, s34, 1')
    E('s_lshl_b32 s36, s35, 1')
    E('s_lshr_b32 s23, s20, 1')
    E('s_add_u32 s36, s36, s23')
    E(f's_mul_i32 s37, s61, {LAG}')
    E('s_add_u32 s37, s37, s36')
    E('s_lshl_b32 s38, s61, 6')
    E('s_add_u32 s38, s38, s36')
    E('s_lshl_b32 s23, s38, 9')
    E('s_lshl_b32 s24, s21, 4')
    E('s_add_u32 s23, s23, s24')
    E('s_lshl_b32 s25, s37, 9')
    E('s_add_u32 s25, s25, s24')
    E(f's_add_u32 s25, s25, {MEM_RDY}')
    E('v_mov_b32 v124, s23')
    E('v_mov_b32 v125, s25')
    L = poll_begin()
    E(f'global_load_dwordx4 v[24:27], v124, {WS} offset:{KV_RDY} sc1')
    E(f'global_load_dwordx4 v[28:31], v125, {WS} sc1')
    E('s_waitcnt vmcnt(0)')
    E('v_and_b32 v24, v24, v25')
    E('v_and_b32 v26, v26, v27')
    E('v_and_b32 v28, v28, v29')
    E('v_and_b32 v30, v30, v31')
    E('v_and_b32 v24, v24, v26')
    E('v_and_b32 v28, v28, v30')
    E('v_and_b32 v24, v24, v28')
    E('v_cmp_ne_u32 s[40:41], 1, v24')
    poll_end(L, 5)
    E(f's_mul_i32 s23, s38, {32 * 24576}')
    E('s_mul_i32 s24, s21, 24576')
    E('s_add_u32 s23, s23, s24')
    E(f's_add_u32 s23, s23, {QKV}')
    E('v_add_u32 v124, s23, v7')
    E('s_and_b32 s24, s20, 1')
    E('s_lshl_b32 s24, s24, 12')
    E('v_add_u32 v125, s24, v124')
    for ks in range(4):
        E(f'global_load_dwordx4 v[{24 + 4 * ks}:{27 + 4 * ks}], v125, {WS} offset:{ks * 1024} sc1')
    for kt in range(2):
        E(f'v_add_u32 v125, {8192 + kt * 4096}, v124')
        for ks in range(4):
            r = 40 + 16 * kt + 4 * ks
            E(f'global_load_dwordx4 v[{r}:{r + 3}], v125, {WS} offset:{ks * 1024} sc1')
    E('s_lshl_b32 s23, s37, 5')
    E('s_add_u32 s23, s23, s21')
    E('s_lshl_b32 s23, s23, 13')
    E(f's_add_u32 s23, s23, {MEMKV}')
    E('v_add_u32 v126, s23, v7')
    for ks in range(4):
        E(f'global_load_dwordx4 v[{72 + 4 * ks}:{75 + 4 * ks}], v126, {WS} offset:{ks * 1024} sc1')
    for hb in range(2):
        E(f'v_add_u32 v125, {16384 + hb * 4096}, v124')
        for e in range(4):
            r = 16 * hb + 4 * e
            E(f'global_load_dwordx4 a[{r}:{r + 3}], v125, {WS} offset:{e * 1024} sc1')
    E('v_add_u32 v126, 4096, v126')
    for ks in range(4):
        E(f'global_load_dwordx4 a[{32 + 4 * ks}:{35 + 4 * ks}], v126, {WS} offset:{ks * 1024} sc1')
    E('s_waitcnt vmcnt(12)')
    for ks in range(4):
        q = f'v[{24 + 4 * ks}:{27 + 4 * ks}]'
        for kt in range(2):
            r = 40 + 16 * kt + 4 * ks
            d = 88 + 4 * kt
            E(f'v_mfma_f32_16x16x32_bf16 v[{d}:{d + 3}], v[{r}:{r + 3}], {q}, {f"v[{d}:{d + 3}]" if ks else 0}')
        E(f'v_mfma_f32_16x16x32_bf16 v[96:99], v[{72 + 4 * ks}:{75 + 4 * ks}], {q}, {"v[96:99]" if ks else 0}')
    E('v_mov_b32 v124, 0xf149f2ca')
    for kt in range(2):
        for r in range(4):
            E(f'v_cmp_le_i32 vcc, {16 * kt + r}, v14')
            E(f'v_cndmask_b32 v{88 + 4 * kt + r}, v124, v{88 + 4 * kt + r}, vcc')
    for k in range(4):
        E(f'v_cndmask_b32 v{96 + k}, v124, v{96 + k}, s[46:47]')
    softmax12(88, 124)
    for j in range(4):
        E(f'v_cvt_pk_bf16_f32 v{100 + j}, v{88 + 2 * j}, v{89 + 2 * j}')
    for j in range(2):
        E(f'v_cvt_pk_bf16_f32 v{104 + j}, v{96 + 2 * j}, v{97 + 2 * j}')
    E('s_waitcnt vmcnt(0)')
    for et in range(8):
        o = f'v[{24 + 4 * et}:{27 + 4 * et}]'
        E(f'v_mfma_f32_16x16x32_bf16 {o}, a[{4 * et}:{4 * et + 3}], v[100:103], 0')
    for et in range(8):
        o = f'v[{24 + 4 * et}:{27 + 4 * et}]'
        mr = 32 + 4 * (et // 2) + 2 * (et % 2)
        E(f'v_mfma_f32_16x16x16_bf16 {o}, a[{mr}:{mr + 1}], v[104:105], {o}')
    for ks in range(4):
        for T in range(2):
            for j in range(2):
                ar = 24 + 4 * (2 * ks + T) + 2 * j
                E(f'v_cvt_pk_bf16_f32 v{56 + 4 * ks + 2 * T + j}, v{ar}, v{ar + 1}')
        E(f'ds_write_b128 v20, v[{56 + 4 * ks}:{59 + 4 * ks}] offset:{ks * 1024}')
    barrier()
    for rt in range(4):
        for ks in range(4):
            r = 24 + 16 * rt + 4 * ks
            E(f'ds_read_b128 v[{r}:{r + 3}], v7 offset:{rt * 4096 + ks * 1024}')
    wait_done(6)
    E('s_waitcnt lgkmcnt(0)')
    for i in range(8):
        accs = [88 + 4 * rt for rt in range(4)]
        for ks in range(4):
            wr = 128 + (i * 4 + ks) * 4
            for rt in range(4):
                r = 24 + 16 * rt + 4 * ks
                ac = f'v[{accs[rt]}:{accs[rt] + 3}]'
                E(f'v_mfma_f32_16x16x32_bf16 {ac}, v[{wr}:{wr + 3}], v[{r}:{r + 3}], {ac if ks else 0}')
        partial_store(i, accs)
    publish_and_reduce(32, 7)
    E('s_lshl_b32 s23, s35, 16')
    E('v_add_u32 v124, s23, v13')
    Lr = a.newlabel('Lres')
    Lr2 = a.newlabel('Lres')
    E('s_cmp_eq_u32 s61, 0')
    E(f's_cbranch_scc0 {Lr}')
    E(f'global_load_dwordx2 v[32:33], v124, {XIN} sc1')
    E(f's_branch {Lr2}')
    a.label(Lr)
    E(f'v_add_u32 v125, {X2}, v124')
    E(f'global_load_dwordx2 v[32:33], v125, {WS} sc1')
    a.label(Lr2)
    E('s_waitcnt vmcnt(0)')
    final_store(X1, 's61', X1_RDY)
    E('s_add_u32 s34, s34, 1')
    E('s_cmp_le_u32 s34, 32')
    a.flush()
    E('s_cbranch_scc1 LB_item')
    E('s_waitcnt vmcnt(0)')
    E('s_endpgm')


def add_resid():
    for j in range(2):
        E(f'v_cvt_pk_bf16_f32 v{34 + j}, v{24 + 2 * j}, v{25 + 2 * j}')
    for j in range(2):
        E(f'v_lshlrev_b32 v{24 + 2 * j}, 16, v{34 + j}')
        E(f'v_and_b32 v{25 + 2 * j}, 0xffff0000, v{34 + j}')
        E(f'v_lshlrev_b32 v{28 + 2 * j}, 16, v{32 + j}')
        E(f'v_and_b32 v{29 + 2 * j}, 0xffff0000, v{32 + j}')
    for k in range(4):
        E(f'v_add_f32 v{24 + k}, v{24 + k}, v{28 + k}')
    for j in range(2):
        E(f'v_cvt_pk_bf16_f32 v{32 + j}, v{24 + 2 * j}, v{25 + 2 * j}')


def final_store(dst, lreg, rdy):
    add_resid()
    E(f's_lshl_b32 s23, {lreg}, 21')
    E(f's_add_u32 s23, s23, {dst}')
    E('v_add_u32 v125, s23, v124')
    E(f'global_store_dwordx2 v125, v[32:33], {WS} sc1')
    E('s_waitcnt vmcnt(0)')
    E(f's_lshl_b32 s23, {lreg}, 5')
    E('s_add_u32 s23, s23, s35')
    E('s_lshl_b32 s23, s23, 7')
    E('s_add_u32 s23, s23, s52')
    E('s_lshl_b32 s23, s23, 2')
    E(f's_add_u32 s23, s23, {rdy}')
    E('v_mov_b32 v124, s23')
    E('v_mov_b32 v125, 1')
    E(f'global_store_dword v124, v125, {WS} sc1')


def gen_F():
    a.label('LroleF')
    E(f's_load_dwordx2 s[12:13], s[0:1], {KA["wg"]}')
    E(f's_load_dwordx2 s[14:15], s[0:1], {KA["wu"]}')
    E(f's_load_dwordx2 s[16:17], s[0:1], {KA["wd"]}')
    E('s_waitcnt lgkmcnt(0)')
    lane_consts()
    E('s_sub_u32 s61, s22, 6')
    E('s_add_u32 s56, s61, 2')
    E('s_lshl_b32 s52, s21, 2')
    E('s_add_u32 s52, s52, s20')
    E('s_cmp_ge_u32 s21, 28')
    E('s_cbranch_scc1 LF_wdone')
    STR = 144
    UPO = 512 * STR
    E('v_lshrrev_b32 v24, 3, v0')
    E('s_lshl_b32 s23, s20, 7')
    E('v_add_u32 v24, s23, v24')
    E('v_and_b32 v25, 7, v0')
    E('s_movk_i32 s23, 3584')
    E('v_mul_lo_u32 v26, v24, s23')
    E('v_lshl_add_u32 v26, v25, 4, v26')
    E('s_lshl_b32 s23, s21, 7')
    E('v_add_u32 v26, s23, v26')
    E(f'v_mul_u32_u24 v27, {STR}, v24')
    E('v_lshl_add_u32 v27, v25, 4, v27')
    for mi, ptr in enumerate(('s[12:13]', 's[14:15]')):
        for b in range(2):
            for i in range(8):
                ii = b * 8 + i
                E(f'v_add_u32 v28, {ii * 8 * 3584}, v26')
                E(f'global_load_dwordx4 v[{32 + 4 * i}:{35 + 4 * i}], v28, {ptr}')
            for i in range(8):
                ii = b * 8 + i
                E(f's_waitcnt vmcnt({7 - i})')
                off = ii * 8 * STR
                if mi == 1:
                    E(f'v_add_u32 v28, {UPO}, v27')
                    E(f'ds_write_b128 v28, v[{32 + 4 * i}:{35 + 4 * i}] offset:{off}')
                else:
                    E(f'ds_write_b128 v27, v[{32 + 4 * i}:{35 + 4 * i}] offset:{off}')
    barrier()
    E('v_lshrrev_b32 v26, 2, v1')
    E('v_lshl_add_u32 v26, v2, 3, v26')
    E(f'v_mul_u32_u24 v26, {STR}, v26')
    E('v_and_b32 v27, 3, v1')
    E('v_lshl_add_u32 v26, v27, 3, v26')
    E('s_lshl_b32 s24, s20, 5')
    E('v_add_u32 v26, s24, v26')
    E(f'v_add_u32 v27, {8 * 32 * STR}, v26')
    E(f'v_add_u32 v28, {UPO}, v26')
    E(f'v_add_u32 v29, {UPO + 8 * 32 * STR}, v26')
    for mi in range(2):
        for ks in range(16):
            r = 64 * mi + 4 * ks
            base = 26 + 2 * mi + ks // 8
            off = (ks % 8) * 32 * STR
            E(f'ds_read_b64_tr_b16 a[{r}:{r + 1}], v{base} offset:{off}')
            E(f'ds_read_b64_tr_b16 a[{r + 2}:{r + 3}], v{base} offset:{off + 4 * STR}')
    barrier()
    STR = 1040
    E('s_lshl_b32 s23, s21, 16')
    E('s_lshl_b32 s24, s20, 14')
    E('s_add_u32 s23, s23, s24')
    E('v_add_u32 v24, s23, v7')
    E(f's_mul_i32 s24, s20, {16 * STR}')
    E('v_add_u32 v25, s24, v7')
    for b in range(2):
        E(f'v_add_u32 v26, {b * 8192}, v24')
        E(f'v_add_u32 v27, {b * 8192 + 4096}, v24')
        for i in range(8):
            E(f'global_load_dwordx4 v[{32 + 4 * i}:{35 + 4 * i}], v{26 + i // 4}, s[16:17] offset:{(i % 4) * 1024}')
        for i in range(8):
            E(f's_waitcnt vmcnt({7 - i})')
            E(f'ds_write_b128 v25, v[{32 + 4 * i}:{35 + 4 * i}] offset:{(b * 8 + i) * STR}')
    barrier()
    E('v_lshrrev_b32 v26, 2, v1')
    E('v_lshl_add_u32 v26, v2, 2, v26')
    E(f'v_mul_u32_u24 v26, {STR}, v26')
    E('v_and_b32 v27, 3, v1')
    E('v_lshl_add_u32 v26, v27, 3, v26')
    E('s_lshl_b32 s24, s20, 8')
    E('v_add_u32 v26, s24, v26')
    for ni in range(8):
        for k2 in range(2):
            r = 128 + (ni * 2 + k2) * 4
            off = k2 * 32 * STR + ni * 32
            E(f'ds_read_b64_tr_b16 v[{r}:{r + 1}], v26 offset:{off}')
            E(f'ds_read_b64_tr_b16 v[{r + 2}:{r + 3}], v26 offset:{off + 16 * STR}')
    E('s_waitcnt lgkmcnt(0)')
    a.label('LF_wdone')
    E('s_barrier')
    team_consts()
    XN = 0
    XH = 65536
    frag_bases(XN)
    E('v_lshlrev_b32 v21, 3, v0')
    E(f'v_add_u32 v21, {XH}, v21')
    E('s_lshl_b32 s23, s20, 11')
    E('v_add_u32 v20, s23, v21')
    E('s_mov_b32 s34, 1')
    a.flush()
    a.label('LF_item')
    E('s_sub_u32 s35, s34, 1')
    E('s_lshl_b32 s23, s61, 5')
    E('s_add_u32 s23, s23, s35')
    E('s_lshl_b32 s23, s23, 9')
    E(f's_add_u32 s23, s23, {X1_RDY}')
    E('v_lshlrev_b32 v124, 3, v0')
    E('v_add_u32 v124, s23, v124')
    L = poll_begin()
    E(f'global_load_dwordx2 v[24:25], v124, {WS} sc1')
    E('s_waitcnt vmcnt(0)')
    E('v_and_b32 v24, v24, v25')
    E('v_cmp_ne_u32 s[40:41], 1, v24')
    poll_end(L, 8)
    E('s_lshl_b32 s33, s61, 21')
    E('s_lshl_b32 s23, s35, 16')
    E('s_add_u32 s33, s33, s23')
    E(f's_add_u32 s33, s33, {X1}')
    E('s_cmp_ge_u32 s21, 28')
    E('s_cbranch_scc1 LF_cons')
    layernorm32(WS, 's33', XN, 0)
    E('s_add_u32 s36, s33, 32768')
    layernorm32(WS, 's36', XN, 32)
    barrier()

    def rd(ks):
        for rt in range(4):
            r = 56 + 16 * (ks % 2) + 4 * rt
            E(f'ds_read_b128 v[{r}:{r + 3}], v{3 + ks % 4} offset:{rt * 16384 + (ks // 4) * 256}')
    rd(0)
    rd(1)
    for ks in range(16):
        E(f's_waitcnt lgkmcnt({4 if ks < 15 else 0})')
        for rt in range(4):
            r = 56 + 16 * (ks % 2) + 4 * rt
            for mi in range(2):
                ar = 24 + 16 * mi + 4 * rt
                acc = f'v[{ar}:{ar + 3}]'
                E(f'v_mfma_f32_16x16x32_bf16 {acc}, a[{64 * mi + 4 * ks}:{64 * mi + 4 * ks + 3}], v[{r}:{r + 3}], {acc if ks else 0}')
        if ks + 2 < 16:
            rd(ks + 2)
    E('s_mov_b32 s23, 0x3d372713')
    E('s_mov_b32 s24, 0xc0135761')
    for k in range(0, 16, 2):
        E(f'v_cvt_pk_bf16_f32 v56, v{24 + k}, v{25 + k}')
        E(f'v_cvt_pk_bf16_f32 v57, v{40 + k}, v{41 + k}')
        E(f'v_lshlrev_b32 v{24 + k}, 16, v56')
        E(f'v_and_b32 v{25 + k}, 0xffff0000, v56')
        E(f'v_lshlrev_b32 v{40 + k}, 16, v57')
        E(f'v_and_b32 v{41 + k}, 0xffff0000, v57')
    for k in range(16):
        g = 24 + k
        t = 56 + k
        E(f'v_mul_f32 v{t}, v{g}, v{g}')
        E(f'v_mul_f32 v{t}, s23, v{t}')
        E(f'v_fma_f32 v{t}, v{t}, v{g}, v{g}')
        E(f'v_mul_f32 v{t}, s24, v{t}')
    for k in range(16):
        E(f'v_exp_f32 v{56 + k}, v{56 + k}')
    for k in range(16):
        E(f'v_add_f32 v{56 + k}, 1.0, v{56 + k}')
    for k in range(16):
        E(f'v_rcp_f32 v{56 + k}, v{56 + k}')
    for k in range(16):
        E(f'v_mul_f32 v{24 + k}, v{24 + k}, v{56 + k}')
    for k in range(0, 16, 2):
        E(f'v_cvt_pk_bf16_f32 v56, v{24 + k}, v{25 + k}')
        E(f'v_lshlrev_b32 v{24 + k}, 16, v56')
        E(f'v_and_b32 v{25 + k}, 0xffff0000, v56')
    for k in range(16):
        E(f'v_mul_f32 v{24 + k}, v{24 + k}, v{40 + k}')
    for rt in range(4):
        for j in range(2):
            E(f'v_cvt_pk_bf16_f32 v{56 + 2 * rt + j}, v{24 + 4 * rt + 2 * j}, v{25 + 4 * rt + 2 * j}')
        E(f'ds_write_b64 v20, v[{56 + 2 * rt}:{57 + 2 * rt}] offset:{rt * 512}')
    barrier()
    for rt in range(4):
        for k2 in range(2):
            r = 24 + 8 * rt + 4 * k2
            E(f'ds_read_b64 v[{r}:{r + 1}], v21 offset:{(2 * k2) * 2048 + rt * 512}')
            E(f'ds_read_b64 v[{r + 2}:{r + 3}], v21 offset:{(2 * k2 + 1) * 2048 + rt * 512}')
    wait_done(9)
    E('s_waitcnt lgkmcnt(0)')
    for i in range(8):
        accs = [88 + 4 * rt for rt in range(4)]
        for k2 in range(2):
            wr = 128 + (i * 2 + k2) * 4
            for rt in range(4):
                r = 24 + 8 * rt + 4 * k2
                ac = f'v[{accs[rt]}:{accs[rt] + 3}]'
                E(f'v_mfma_f32_16x16x32_bf16 {ac}, v[{wr}:{wr + 3}], v[{r}:{r + 3}], {ac if k2 else 0}')
        partial_store(i, accs)
    publish_and_reduce(28, 10, 'LF_cons')
    E('v_add_u32 v125, s33, v13')
    E(f'global_load_dwordx2 v[32:33], v125, {WS} sc1')
    E('s_lshl_b32 s23, s35, 16')
    E('v_add_u32 v124, s23, v13')
    E('s_waitcnt vmcnt(0)')
    add_resid()
    Lo = a.newlabel('Lfo')
    Lo2 = a.newlabel('Lfo')
    E('s_cmp_eq_u32 s61, 0')
    E(f's_cbranch_scc0 {Lo}')
    E(f'v_add_u32 v125, {X2}, v124')
    E(f'global_store_dwordx2 v125, v[32:33], {WS} sc1')
    E('s_waitcnt vmcnt(0)')
    E('s_lshl_b32 s23, s35, 7')
    E('s_add_u32 s23, s23, s52')
    E('s_lshl_b32 s23, s23, 2')
    E(f's_add_u32 s23, s23, {X2_RDY}')
    E('v_mov_b32 v124, s23')
    E('v_mov_b32 v125, 1')
    E(f'global_store_dword v124, v125, {WS} sc1')
    E(f's_branch {Lo2}')
    a.label(Lo)
    E(f'global_store_dwordx2 v124, v[32:33], {OUT}')
    a.label(Lo2)
    E('s_add_u32 s34, s34, 1')
    E('s_cmp_le_u32 s34, 32')
    a.flush()
    E('s_cbranch_scc1 LF_item')
    E('s_waitcnt vmcnt(0)')
    E('s_endpgm')


def gen_mega():
    a.lines.append('.globl mega_kernel\n.p2align 8\n.type mega_kernel,@function\nmega_kernel:')
    E('s_cmp_ge_u32 s2, 256')
    E('s_cbranch_scc1 Lmega_exit')
    E(f's_load_dwordx2 s[4:5], s[0:1], {KA["ws"]}')
    E(f's_load_dwordx2 s[6:7], s[0:1], {KA["x"]}')
    E(f's_load_dwordx2 s[8:9], s[0:1], {KA["out"]}')
    E(f's_load_dwordx2 s[10:11], s[0:1], {KA["dbg"]}')
    E('v_lshrrev_b32 v1, 6, v0')
    E('v_readfirstlane_b32 s20, v1')
    E('v_and_b32 v0, 63, v0')
    E('s_getreg_b32 s22, hwreg(HW_REG_XCC_ID)')
    E('s_and_b32 s22, s22, 7')
    E('s_waitcnt lgkmcnt(0)')
    E('s_cmp_lg_u32 s20, 0')
    E('s_cbranch_scc1 Lticket_skip')
    E('s_mov_b64 exec, 1')
    E('s_lshl_b32 s23, s22, 2')
    E('v_mov_b32 v2, s23')
    E('v_mov_b32 v3, 1')
    E(f'global_atomic_add v4, v2, v3, {DBG} sc0 sc1')
    E('v_mov_b32 v5, 0')
    E('s_waitcnt vmcnt(0)')
    E('ds_write_b32 v5, v4')
    E('s_mov_b64 exec, -1')
    a.label('Lticket_skip')
    barrier()
    E('v_mov_b32 v5, 0')
    E('ds_read_b32 v4, v5')
    E('s_waitcnt lgkmcnt(0)')
    E('v_readfirstlane_b32 s21, v4')
    E('s_barrier')
    E('s_cmp_ge_u32 s21, 32')
    E('s_cbranch_scc1 Lmega_exit')
    E('s_cmp_eq_u32 s22, 0')
    E('s_cbranch_scc1 Lchain')
    E('s_cmp_le_u32 s22, 3')
    E('s_cbranch_scc1 LroleA')
    E('s_cmp_le_u32 s22, 5')
    E('s_cbranch_scc1 LroleB')
    E('s_branch LroleF')
    a.label('Lmega_exit')
    E('s_endpgm')
    gen_chain()
    tabs = gen_A()
    gen_B()
    gen_F()
    a.lines.append('.p2align 6')
    a.lines.append('Ltab_A:')
    for t in tabs:
        t = t + [255] * (64 - len(t))
        a.lines.append('.long ' + ', '.join(str(x) for x in t))


HEADER = open('interleave_layers__memory_aug_recurrent_mem_tr__geglu_ffn__prompt.s.ref').read().split('; Override launch')[0]

nwg_init = ZERO_END // 4096
out = HEADER
out += f'; @launch kernel=init_kernel grid=({nwg_init},1,1) block=(256,1,1) lds=0\n'
out += '; @launch kernel=mega_kernel grid=(256,1,1) block=(256,1,1) lds=163840\n'
out += '.amdgcn_target "amdgcn-amd-amdhsa--gfx950"\n.text\n'
gen_init()
gen_mega()
out += a.text()
out += '''.section .rodata,"a"
.p2align 6
.amdhsa_kernel init_kernel
  .amdhsa_next_free_vgpr 8
  .amdhsa_next_free_sgpr 16
  .amdhsa_accum_offset 8
  .amdhsa_group_segment_fixed_size 0
  .amdhsa_kernarg_size 112
  .amdhsa_user_sgpr_count 2
  .amdhsa_user_sgpr_kernarg_segment_ptr 1
  .amdhsa_system_sgpr_workgroup_id_x 1
.end_amdhsa_kernel
.p2align 6
.amdhsa_kernel mega_kernel
  .amdhsa_next_free_vgpr 512
  .amdhsa_next_free_sgpr 102
  .amdhsa_accum_offset 256
  .amdhsa_group_segment_fixed_size 0
  .amdhsa_kernarg_size 112
  .amdhsa_user_sgpr_count 2
  .amdhsa_user_sgpr_kernarg_segment_ptr 1
  .amdhsa_system_sgpr_workgroup_id_x 1
.end_amdhsa_kernel
'''
open(sys.argv[1], 'w').write(out)
print('instructions:', a.ninstr, 'bytes:', len(out))
```

```python
import re

_REG = re.compile(r'^(v|a|s)(\d+)$')
_RNG = re.compile(r'^(v|a|s)\[(\d+):(\d+)\]$')

TRANS = ('v_exp_f32', 'v_log_f32', 'v_rcp_f32', 'v_rsq_f32', 'v_sqrt_f32', 'v_sin_f32', 'v_cos_f32')


def regs_of(op):
    op = op.strip()
    if op.startswith('-'):
        op = op[1:]
    if op.startswith('abs(') and op.endswith(')'):
        op = op[4:-1]
    m = _REG.match(op)
    if m:
        return [(m.group(1), int(m.group(2)))]
    m = _RNG.match(op)
    if m:
        return [(m.group(1), i) for i in range(int(m.group(2)), int(m.group(3)) + 1)]
    if op == 'vcc':
        return [('vcc', 0)]
    return []


class Asm:
    def __init__(self):
        self.lines = []
        self.ws = 0
        self.lastw = {}
        self.mfma_c = {}
        self.store_data = {}
        self.nlab = 0
        self.ninstr = 0
        self.nds = 0
        self.nvm = 0

    def label(self, name):
        self.lines.append(f'{name}:')

    def newlabel(self, base='L'):
        self.nlab += 1
        return f'{base}_{self.nlab}'

    def comment(self, s):
        self.lines.append(f'    ; {s}')

    def _nop(self, n):
        while n > 0:
            k = min(n, 16)
            self.lines.append(f'    s_nop {k - 1}')
            self.ws += k
            self.ninstr += 1
            n -= k

    def flush(self):
        need = 0
        for r, (kind, idx, _) in self.lastw.items():
            d = {'mfma': 8, 'valu': 2, 'trans': 2, 'vsgpr': 5}.get(kind, 0)
            need = max(need, d - (self.ws - idx - 1))
        for r, idx in self.mfma_c.items():
            need = max(need, 3 - (self.ws - idx - 1))
        for r, idx in self.store_data.items():
            need = max(need, 2 - (self.ws - idx - 1))
        if need > 0:
            self._nop(need)

    def __call__(self, text):
        text = text.strip()
        parts = text.split(None, 1)
        mn = parts[0]
        rest = parts[1] if len(parts) > 1 else ''
        ops = [o.strip() for o in rest.split(',')] if rest else []
        cleaned = []
        for o in ops:
            toks = o.split()
            cleaned.append(toks[0] if toks else '')
        ops = cleaned
        reads, writes = [], []
        kind = None
        srcC = []
        is_dpp = '_dpp' in mn or 'quad_perm' in text or 'row_' in text
        if mn.startswith('v_mfma'):
            kind = 'mfma'
            writes = regs_of(ops[0])
            ab = regs_of(ops[1]) + regs_of(ops[2])
            srcC = regs_of(ops[3])
            reads = ab + srcC
        elif mn.startswith('v_permlane'):
            kind = 'valu'
            writes = regs_of(ops[0]) + regs_of(ops[1])
            reads = list(writes)
        elif mn.startswith('v_cmp'):
            kind = 'vsgpr'
            writes = regs_of(ops[0])
            for o in ops[1:]:
                reads += regs_of(o)
        elif mn.startswith('v_readfirstlane') or mn.startswith('v_readlane'):
            kind = 'vsgpr'
            writes = regs_of(ops[0])
            for o in ops[1:]:
                reads += regs_of(o)
        elif mn.startswith('v_'):
            kind = 'trans' if mn in TRANS else 'valu'
            writes = regs_of(ops[0])
            for o in ops[1:]:
                reads += regs_of(o)
            if mn.startswith('v_fmac') or mn.startswith('v_pk_fmac'):
                reads += writes
            if mn.startswith('v_cndmask') and len(ops) == 3:
                reads += [('vcc', 0)]
        elif mn.startswith('ds_read') or mn.startswith('global_load') or mn.startswith('buffer_load'):
            kind = 'load'
            writes = regs_of(ops[0])
            for o in ops[1:]:
                reads += regs_of(o)
        elif mn.startswith('ds_write') or mn.startswith('global_store') or mn.startswith('buffer_store'):
            kind = 'store'
            for o in ops:
                reads += regs_of(o)
        elif mn.startswith('global_atomic'):
            kind = 'store'
            for o in ops:
                reads += regs_of(o)
            if 'sc0' in text:
                writes = regs_of(ops[0])
        elif mn.startswith('s_'):
            kind = 'salu'
        need = 0

        def dist(idx):
            return self.ws - idx - 1

        is_vmem = mn.startswith('global_') or mn.startswith('buffer_')
        if kind in ('mfma', 'valu', 'trans', 'vsgpr', 'load', 'store'):
            for r in reads:
                lw = self.lastw.get(r)
                if lw is None:
                    continue
                pk, idx, extra = lw
                d = 0
                if pk == 'mfma':
                    if kind == 'mfma':
                        if r in srcC:
                            d = 0 if extra == (mn,) + tuple(srcC) else 8
                            if r in regs_of(ops[1]) + regs_of(ops[2]):
                                d = 8
                        else:
                            d = 8
                    else:
                        d = 8
                elif pk in ('valu', 'trans'):
                    if kind == 'mfma':
                        d = 2
                    elif mn.startswith('v_permlane') or is_dpp:
                        d = 2
                    elif mn.startswith('v_readfirstlane') or mn.startswith('v_readlane'):
                        d = 1
                    elif pk == 'trans' and kind in ('valu', 'vsgpr'):
                        d = 1
                elif pk == 'vsgpr':
                    if is_vmem:
                        d = 5
                    elif kind in ('valu', 'trans', 'vsgpr', 'mfma'):
                        d = 2
                need = max(need, d - dist(idx))
            if kind in ('valu', 'trans', 'load'):
                for r in writes:
                    lw = self.lastw.get(r)
                    if lw is not None and lw[0] == 'mfma':
                        need = max(need, 8 - dist(lw[1]))
                    if kind != 'load':
                        if r in self.mfma_c:
                            need = max(need, 3 - dist(self.mfma_c[r]))
                        if r in self.store_data:
                            need = max(need, 2 - dist(self.store_data[r]))
        if need > 0:
            self._nop(need)
        self.lines.append('    ' + text)
        self.ninstr += 1
        if mn.startswith('ds_'):
            self.nds += 1
        if is_vmem:
            self.nvm += 1
        idx = self.ws
        if mn == 's_nop':
            self.ws += int(ops[0]) + 1
        else:
            self.ws += 1
        for r in writes:
            if kind == 'mfma':
                self.lastw[r] = ('mfma', idx, (mn,) + tuple(writes))
            elif kind in ('valu', 'trans', 'vsgpr'):
                self.lastw[r] = (kind, idx, None)
            else:
                self.lastw.pop(r, None)
        if kind == 'mfma':
            for r in srcC:
                self.mfma_c[r] = idx
        if kind == 'store' and ('x4' in mn or 'x3' in mn or 'b128' in mn):
            for r in reads:
                if r[0] in ('v', 'a'):
                    self.store_data[r] = idx

    def text(self):
        return '\n'.join(self.lines) + '\n'

    def wait_ds(self, seq):
        n = self.nds - seq
        self(f's_waitcnt lgkmcnt({min(n, 15)})')

    def wait_vm(self, seq):
        n = self.nvm - seq
        self(f's_waitcnt vmcnt({min(n, 63)})')
```

```python
import sys
from asmlib import Asm

LAG = int(sys.argv[2]) if len(sys.argv) > 2 else 10
import os
NSTEP = int(os.environ.get("NSTEP", 64 + LAG))
TMO = int(os.environ.get("TMO", 400000))

KV_RDY = 0x0
MEM_RDY = 0x10000
X1_RDY = 0x20000
X2_RDY = 0x28000
PF = 0x2C000
DONE = 0x2D000
CSLICE = 0x30000
ZBLK = 0x38000
CPART = 0x40000
ZERO_END = 0x140000
MEMKV = 0x200000
X1 = 0x1A00000
X2 = 0x1E00000
BPART = 0x2000000
QKV = 0x3000000

KA = dict(x=0, mem0=8, wq=16, wk=24, wv=32, wo=40, wg=64, wu=72, wd=80, out=88, dbg=96, ws=104)

a = Asm()
E = a


def v(i, n=1):
    return f'v{i}' if n == 1 else f'v[{i}:{i + n - 1}]'


def ag(i, n=1):
    return f'a{i}' if n == 1 else f'a[{i}:{i + n - 1}]'


def s(i, n=1):
    return f's{i}' if n == 1 else f's[{i}:{i + n - 1}]'


WS = 's[4:5]'
XIN = 's[6:7]'
OUT = 's[8:9]'
DBG = 's[10:11]'


def timeout_exit(code):
    E(f'v_mov_b32 v126, {64 + 4 * code}')
    E(f'v_mov_b32 v127, {0x100 + code}')
    E(f'global_store_dword v126, v127, {DBG}')
    E('s_waitcnt vmcnt(0)')
    E('s_endpgm')


def poll_begin():
    L = a.newlabel('Lpoll')
    E('s_mov_b32 s90, 0')
    a.flush()
    a.label(L)
    return L


def poll_end(L, code):
    Ld = a.newlabel('Lpd')
    E('s_cmp_eq_u64 s[40:41], 0')
    E(f's_cbranch_scc1 {Ld}')
    E('s_add_u32 s90, s90, 1')
    E(f's_cmp_lt_u32 s90, {TMO}')
    a.flush()
    E(f's_cbranch_scc1 {L}')
    timeout_exit(code)
    a.label(Ld)


DUMP = int(os.environ.get("DUMP", 0))
def dump(slot, r0, n):
    if not DUMP:
        return
    E('s_lshl_b32 s23, s21, 2')
    E('s_add_u32 s23, s23, s20')
    E('s_lshl_b32 s23, s23, 13')
    E(f's_add_u32 s23, s23, {0xA000000 + slot * 0x100000}')
    E('v_add_u32 v127, s23, v7')
    for k in range(n // 4):
        E(f'global_store_dwordx4 v127, v[{r0 + 4 * k}:{r0 + 4 * k + 3}], {WS} offset:{k * 1024}')
    E('s_waitcnt vmcnt(0)')


STAMP = int(os.environ.get("STAMP", 0))
def stamp(idxreg, k):
    if not STAMP:
        return
    E('s_memrealtime s[92:93]')
    E(f's_lshl_b32 s23, {idxreg}, 6')
    E('s_lshl_b32 s24, s22, 16')
    E('s_add_u32 s23, s23, s24')
    E(f's_add_u32 s23, s23, {0xB000000 + 4 * k}')
    E('s_or_b32 s24, s20, s21')
    E('s_cmp_lg_u32 s24, 0')
    E(f's_cselect_b32 s23, {0xB100000}, s23')
    E('v_mov_b32 v126, s23')
    E('s_waitcnt lgkmcnt(0)')
    E('v_mov_b32 v127, s92')
    E(f'global_store_dword v126, v127, {WS}')


def stampval(idxreg, k, sreg):
    if not STAMP:
        return
    L = a.newlabel('Lst')
    E('s_or_b32 s23, s20, s21')
    E('s_cmp_lg_u32 s23, 0')
    E(f's_cbranch_scc1 {L}')
    E(f's_lshl_b32 s23, {idxreg}, 6')
    E('s_lshl_b32 s24, s22, 16')
    E('s_add_u32 s23, s23, s24')
    E(f's_add_u32 s23, s23, {0xB000000 + 4 * k}')
    E('v_mov_b32 v126, s23')
    E(f'v_mov_b32 v127, {sreg}')
    E(f'global_store_dword v126, v127, {WS}')
    a.flush()
    a.label(L)


def barrier():
    E('s_waitcnt lgkmcnt(0)')
    E('s_barrier')


def gen_init():
    a.lines.append('.globl init_kernel\n.p2align 8\n.type init_kernel,@function\ninit_kernel:')
    nwg = ZERO_END // 4096
    E(f's_cmp_ge_u32 s2, {nwg}')
    E('s_cbranch_scc1 Linit_done')
    E(f's_load_dwordx2 s[4:5], s[0:1], {KA["ws"]}')
    E('s_lshl_b32 s3, s2, 12')
    E('v_lshlrev_b32 v1, 4, v0')
    E('v_add_u32 v1, s3, v1')
    E('v_mov_b32 v4, 0')
    E('v_mov_b32 v5, 0')
    E('v_mov_b32 v6, 0')
    E('v_mov_b32 v7, 0')
    E('s_waitcnt lgkmcnt(0)')
    E('global_store_dwordx4 v1, v[4:7], s[4:5]')
    E('s_waitcnt vmcnt(0)')
    a.label('Linit_done')
    E('s_endpgm')
    return nwg


def lane_consts():
    E('v_and_b32 v1, 15, v0')
    E('v_lshrrev_b32 v2, 4, v0')
    E('v_lshlrev_b32 v7, 4, v0')


def frag_bases(region):
    for q in range(4):
        E(f'v_add_u32 v124, {4 * q}, v2')
        E('v_xor_b32 v124, v124, v1')
        E('v_lshlrev_b32 v124, 4, v124')
        E('v_lshl_add_u32 v124, v1, 10, v124')
        E(f'v_add_u32 v{3 + q}, {region}, v124')


def load_wqkv():
    STR = 272
    E('s_lshl_b32 s23, s20, 7')
    E('v_add_u32 v24, s23, v2')
    E('v_lshlrev_b32 v25, 13, v24')
    E('s_lshl_b32 s24, s21, 8')
    E('v_lshl_add_u32 v25, v1, 4, v25')
    E('v_add_u32 v25, s24, v25')
    E(f'v_mul_u32_u24 v26, {STR}, v24')
    E('v_lshl_add_u32 v26, v1, 4, v26')
    E('v_lshrrev_b32 v27, 2, v1')
    E('v_lshl_add_u32 v27, v2, 3, v27')
    E(f'v_mul_u32_u24 v27, {STR}, v27')
    E('v_and_b32 v28, 3, v1')
    E('v_lshlrev_b32 v28, 3, v28')
    E('v_add_u32 v27, v27, v28')
    E('s_lshl_b32 s23, s20, 6')
    E('v_add_u32 v27, s23, v27')
    for q in range(1, 4):
        E(f'v_add_u32 v{27 + q}, {4 * 32 * STR * q}, v27')
    for mi, (ptr, dst) in enumerate((('s[12:13]', ('a', 0)), ('s[14:15]', ('a', 128)), ('s[16:17]', ('v', 128)))):
        for b in range(4):
            for i in range(8):
                ii = b * 8 + i
                E(f'v_add_u32 v31, {ii * 4 * 8192}, v25')
                E(f'global_load_dwordx4 v[{32 + 4 * i}:{35 + 4 * i}], v31, {ptr}')
            for i in range(8):
                ii = b * 8 + i
                E(f's_waitcnt vmcnt({7 - i})')
                E(f'ds_write_b128 v26, v[{32 + 4 * i}:{35 + 4 * i}] offset:{ii * 4 * STR}')
        barrier()
        for T in range(2):
            for ks in range(16):
                base = 27 + ks // 4
                off = (ks % 4) * 32 * STR + T * 32
                r = dst[1] + (T * 16 + ks) * 4
                p = dst[0]
                E(f'ds_read_b64_tr_b16 {p}[{r}:{r + 1}], v{base} offset:{off}')
                E(f'ds_read_b64_tr_b16 {p}[{r + 2}:{r + 3}], v{base} offset:{off + 4 * STR}')
        barrier()


def wfrag(m, T, ks):
    r = (T * 16 + ks) * 4
    if m == 0:
        return f'a[{r}:{r + 3}]'
    if m == 1:
        return f'a[{128 + r}:{128 + r + 3}]'
    return f'v[{128 + r}:{128 + r + 3}]'


def layernorm64(src, voff_sgpr, region, extra_loads=None):
    E('v_lshrrev_b32 v24, 3, v0')
    E('s_lshl_b32 s23, s20, 3')
    E('v_add_u32 v24, s23, v24')
    E('v_and_b32 v25, 7, v0')
    E('v_lshlrev_b32 v26, 10, v24')
    E('v_lshl_add_u32 v26, v25, 4, v26')
    E(f'v_add_u32 v26, {voff_sgpr}, v26')
    E('v_add_u32 v27, 32768, v26')
    hb = (92, 28)
    seq = [[], []]
    for hf in range(2):
        for i in range(8):
            E(f'global_load_dwordx4 v[{hb[hf] + 4 * i}:{hb[hf] + 3 + 4 * i}], v{26 + hf}, {src} offset:{i * 128} sc1')
            seq[hf].append(a.nvm)
    if extra_loads:
        extra_loads()
    E('v_and_b32 v27, 7, v24')
    E('v_xor_b32 v27, v27, v25')
    E('v_lshlrev_b32 v27, 4, v27')
    E('v_lshl_add_u32 v27, v24, 10, v27')
    E('v_bfe_u32 v25, v24, 3, 1')
    E('v_lshl_add_u32 v27, v25, 7, v27')
    E(f'v_add_u32 v27, {region}, v27')
    E('v_xor_b32 v25, 128, v27')

    def red8(r):
        E(f'v_add_f32_dpp v{r}, v{r}, v{r} quad_perm:[1,0,3,2] row_mask:0xf bank_mask:0xf')
        E(f'v_add_f32_dpp v{r}, v{r}, v{r} quad_perm:[2,3,0,1] row_mask:0xf bank_mask:0xf')
        E(f'v_add_f32_dpp v{r}, v{r}, v{r} row_half_mirror row_mask:0xf bank_mask:0xf')
    for hf in range(2):
        for i in range(8):
            a.wait_vm(seq[hf][i])
            for j in range(4):
                src_r = hb[hf] + 4 * i + j
                d = 60 + 8 * i + 2 * j
                E(f'v_lshlrev_b32 v{d}, 16, v{src_r}')
                E(f'v_and_b32 v{d + 1}, 0xffff0000, v{src_r}')
        E('v_pk_add_f32 v[124:125], v[60:61], v[62:63]')
        for k in range(4, 64, 2):
            E(f'v_pk_add_f32 v[124:125], v[124:125], v[{60 + k}:{61 + k}]')
        E('v_add_f32 v124, v124, v125')
        red8(124)
        E('v_mul_f32 v124, 0xbb000000, v124')
        E('v_mov_b32 v125, v124')
        for k in range(0, 64, 2):
            E(f'v_pk_add_f32 v[{60 + k}:{61 + k}], v[{60 + k}:{61 + k}], v[124:125]')
        E('v_pk_mul_f32 v[124:125], v[60:61], v[60:61]')
        for k in range(2, 64, 2):
            E(f'v_pk_fma_f32 v[124:125], v[{60 + k}:{61 + k}], v[{60 + k}:{61 + k}], v[124:125]')
        E('v_add_f32 v124, v124, v125')
        red8(124)
        E('v_mov_b32 v125, 0x3727c5ac')
        E('v_fmac_f32 v125, 0x3b000000, v124')
        E('v_rsq_f32 v124, v125')
        E('v_mov_b32 v125, v124')
        for i in range(8):
            for j in range(4):
                d = 60 + 8 * i + 2 * j
                E(f'v_pk_mul_f32 v[{d}:{d + 1}], v[{d}:{d + 1}], v[124:125]')
                E(f'v_cvt_pk_bf16_f32 v{60 + 4 * i + j}, v{d}, v{d + 1}')
            E(f'ds_write_b128 v{27 if i % 2 == 0 else 25}, v[{60 + 4 * i}:{63 + 4 * i}] offset:{hf * 32768 + (i >> 1) * 256}')


def xlane_reduce(op, r, t):
    E(f'v_mov_b32 v{t}, v{r}')
    E(f'v_permlane16_swap_b32 v{r}, v{t}')
    E(f'{op} v{r}, v{r}, v{t}')
    E(f'v_mov_b32 v{t}, v{r}')
    E(f'v_permlane32_swap_b32 v{r}, v{t}')
    E(f'{op} v{r}, v{r}, v{t}')


SC_LOG2E = 0x3e0293ee


def softmax12(base, t0):
    E(f'v_max3_f32 v{t0}, v{base}, v{base + 1}, v{base + 2}')
    for k in range(3, 11, 2):
        E(f'v_max3_f32 v{t0}, v{t0}, v{base + k}, v{base + k + 1}')
    E(f'v_max_f32 v{t0}, v{t0}, v{base + 11}')
    xlane_reduce('v_max_f32', t0, t0 + 1)
    E(f's_mov_b32 s23, {SC_LOG2E}')
    for k in range(12):
        E(f'v_sub_f32 v{base + k}, v{base + k}, v{t0}')
    for k in range(12):
        E(f'v_mul_f32 v{base + k}, s23, v{base + k}')
    for k in range(12):
        E(f'v_exp_f32 v{base + k}, v{base + k}')
    E(f'v_add_f32 v{t0}, v{base}, v{base + 1}')
    for k in range(2, 12):
        E(f'v_add_f32 v{t0}, v{t0}, v{base + k}')
    xlane_reduce('v_add_f32', t0, t0 + 1)
    E(f'v_rcp_f32 v{t0}, v{t0}')
    for k in range(12):
        E(f'v_mul_f32 v{base + k}, v{base + k}, v{t0}')


def softmax_list(R, t0):
    o = []
    o.append(f'v_max3_f32 v{t0}, v{R[0]}, v{R[1]}, v{R[2]}')
    for k in range(3, 11, 2):
        o.append(f'v_max3_f32 v{t0}, v{t0}, v{R[k]}, v{R[k + 1]}')
    o.append(f'v_max_f32 v{t0}, v{t0}, v{R[11]}')

    def xl(op):
        t = t0 + 1
        o.append(f'v_mov_b32 v{t}, v{t0}')
        o.append(f'v_permlane16_swap_b32 v{t0}, v{t}')
        o.append(f'{op} v{t0}, v{t0}, v{t}')
        o.append(f'v_mov_b32 v{t}, v{t0}')
        o.append(f'v_permlane32_swap_b32 v{t0}, v{t}')
        o.append(f'{op} v{t0}, v{t0}, v{t}')
    xl('v_max_f32')
    o.append(f's_mov_b32 s23, {SC_LOG2E}')
    o.append(f'v_mul_f32 v{t0}, s23, v{t0}')
    for k in range(12):
        o.append(f'v_fma_f32 v{R[k]}, v{R[k]}, s23, -v{t0}')
    for k in range(12):
        o.append(f'v_exp_f32 v{R[k]}, v{R[k]}')
    o.append(f'v_add_f32 v{t0}, v{R[0]}, v{R[1]}')
    for k in range(2, 12):
        o.append(f'v_add_f32 v{t0}, v{t0}, v{R[k]}')
    xl('v_add_f32')
    o.append(f'v_rcp_f32 v{t0}, v{t0}')
    for k in range(12):
        o.append(f'v_mul_f32 v{R[k]}, v{R[k]}, v{t0}')
    return o


WOF = 0
MEMT = 131072
XS = 147456
XO_REL = 12288


def gen_chain():
    a.label('Lchain')
    E(f's_load_dwordx2 s[12:13], s[0:1], {KA["wq"]}')
    E(f's_load_dwordx2 s[14:15], s[0:1], {KA["wk"]}')
    E(f's_load_dwordx2 s[16:17], s[0:1], {KA["wv"]}')
    E(f's_load_dwordx2 s[18:19], s[0:1], {KA["wo"]}')
    E(f's_load_dwordx2 s[48:49], s[0:1], {KA["mem0"]}')
    E('s_waitcnt lgkmcnt(0)')
    lane_consts()
    load_wqkv()
    stamp('s94', 1)
    STG = 131072
    STR = 1040
    E('s_lshl_b32 s23, s21, 17')
    E('s_lshl_b32 s24, s20, 12')
    E('s_add_u32 s23, s23, s24')
    E('v_add_u32 v24, s23, v7')
    E(f's_mul_i32 s24, s20, {4 * STR}')
    E('v_add_u32 v25, s24, v7')
    E(f'v_add_u32 v25, {STG}, v25')
    E('v_lshrrev_b32 v26, 2, v1')
    E('v_lshl_add_u32 v26, v2, 2, v26')
    E(f'v_mul_u32_u24 v26, {STR}, v26')
    E('v_and_b32 v27, 3, v1')
    E('v_lshl_add_u32 v26, v27, 3, v26')
    E('s_lshl_b32 s24, s20, 8')
    E('v_add_u32 v26, s24, v26')
    E(f'v_add_u32 v26, {STG}, v26')
    E('s_lshl_b32 s24, s20, 13')
    E('v_add_u32 v27, s24, v7')
    E('v_add_u32 v28, 65536, v27')
    for c in range(8):
        ks, hf = c // 2, c % 2
        E(f'v_add_u32 v29, {c * 16 * 1024}, v24')
        for i in range(4):
            E(f'global_load_dwordx4 v[{32 + 4 * i}:{35 + 4 * i}], v29, s[18:19] offset:{i * 1024}')
        for i in range(4):
            E(f's_waitcnt vmcnt({3 - i})')
            E(f'ds_write_b128 v25, v[{32 + 4 * i}:{35 + 4 * i}] offset:{i * STR}')
        barrier()
        for i in range(8):
            E(f'ds_read_b64_tr_b16 v[{48 + 2 * i}:{49 + 2 * i}], v26 offset:{i * 32}')
        for i in range(8):
            E(f's_waitcnt lgkmcnt({7 - i})')
            dreg = 27 if ks < 2 else 28
            E(f'ds_write_b64 v{dreg}, v[{48 + 2 * i}:{49 + 2 * i}] offset:{(ks % 2) * 32768 + i * 1024 + 8 * hf}')
        barrier()
    stamp('s94', 2)
    frag_bases(MEMT)
    E('v_lshrrev_b32 v24, 2, v0')
    E('v_and_b32 v25, 3, v0')
    E('v_lshrrev_b32 v26, 1, v25')
    E('v_xor_b32 v26, v26, v24')
    E('v_lshlrev_b32 v26, 4, v26')
    E('v_and_b32 v27, 1, v25')
    E('v_lshlrev_b32 v27, 3, v27')
    E('v_lshl_add_u32 v27, v24, 10, v27')
    E('s_lshl_b32 s23, s20, 8')
    E('v_add_u32 v27, s23, v27')
    E(f'v_add_u32 v27, {MEMT}, v27')
    E('v_or_b32 v8, v27, v26')
    E(f'v_add_u32 v21, {XS}, v7')
    E('s_mul_i32 s23, s20, 3072')
    E('v_add_u32 v9, s23, v21')
    E('s_lshl_b32 s23, s20, 10')
    E('v_add_u32 v20, s23, v21')
    E(f'v_add_u32 v20, {XO_REL}, v20')
    E('v_mov_b32 v10, 0xfffffffe')
    E('s_lshl_b32 s23, s20, 17')
    E('s_lshl_b32 s24, s21, 9')
    E('s_add_u32 s23, s23, s24')
    E(f's_add_u32 s23, s23, {CPART}')
    E('v_lshlrev_b32 v24, 5, v1')
    E('v_lshl_add_u32 v24, v2, 3, v24')
    E('v_add_u32 v11, s23, v24')
    E('v_lshrrev_b32 v24, 2, v1')
    E('v_and_b32 v25, 3, v1')
    E('s_lshl_b32 s23, s20, 2')
    E('v_add_u32 v26, s23, v25')
    E('v_lshlrev_b32 v26, 5, v26')
    E('v_lshl_add_u32 v26, v24, 3, v26')
    E('v_lshl_add_u32 v26, v2, 9, v26')
    E('s_lshl_b32 s24, s21, 14')
    E(f's_add_u32 s24, s24, {CPART}')
    E('v_add_u32 v12, s24, v26')
    E('v_add_u32 v26, s23, v25')
    E('v_lshl_add_u32 v27, v26, 2, v24')
    E('v_lshlrev_b32 v27, 4, v27')
    E('s_lshl_b32 s24, s21, 10')
    E(f's_add_u32 s24, s24, {CSLICE}')
    E('v_add_u32 v13, s24, v27')
    E('v_and_b32 v27, 7, v26')
    E('v_lshlrev_b32 v27, 10, v27')
    E('v_lshl_add_u32 v27, v24, 3, v27')
    E('s_lshl_b32 s24, s21, 5')
    E('v_add_u32 v27, s24, v27')
    E('global_load_dwordx2 v[28:29], v27, s[48:49]')
    E('v_cmp_le_u32 s[50:51], 8, v26')
    E('s_lshl_b32 s23, s20, 13')
    E(f's_add_u32 s23, s23, {CSLICE}')
    E('v_add_u32 v14, s23, v7')
    E('v_add_u32 v15, 4096, v14')
    E('s_lshl_b32 s23, s20, 13')
    E('v_add_u32 v22, s23, v7')
    E('v_add_u32 v23, 65536, v22')
    E('s_waitcnt vmcnt(0)')
    E('v_mov_b32 v16, v28')
    E('v_mov_b32 v17, v29')
    E('v_mov_b32 v18, 0')
    E('v_mov_b32 v19, 0')
    E('v_cmp_le_u32 s[44:45], 8, v1')
    E('v_lshrrev_b32 v24, 1, v2')
    E('v_lshrrev_b32 v25, 3, v1')
    E('v_cmp_eq_u32 s[46:47], v24, v25')
    for r in range(80, 112):
        E(f'v_mov_b32 v{r}, 0')
    E('v_lshrrev_b32 v24, 2, v0')
    E('v_and_b32 v24, 7, v24')
    E('v_lshlrev_b32 v24, 10, v24')
    E('v_and_b32 v25, 3, v0')
    E('v_lshl_add_u32 v24, v25, 3, v24')
    E('s_lshl_b32 s23, s20, 8')
    E('v_add_u32 v24, s23, v24')
    for i in range(8):
        E(f'global_load_dwordx2 v[{48 + 2 * i}:{49 + 2 * i}], v24, s[48:49] offset:{i * 32}')
    for i in range(8):
        E(f's_waitcnt vmcnt({7 - i})')
        E(f'v_xor_b32 v25, {i << 5}, v8')
        E(f'ds_write_b64 v25, v[{48 + 2 * i}:{49 + 2 * i}]')
    E('s_mov_b32 s30, 0')
    E('s_lshl_b32 s52, s21, 2')
    E('s_add_u32 s52, s52, s20')
    E('s_mul_i32 s53, s21, 24576')
    E('s_lshl_b32 s23, s20, 10')
    E('s_add_u32 s53, s53, s23')
    E(f's_add_u32 s53, s53, {QKV}')

    E('s_lshl_b32 s23, s20, 10')
    E(f's_add_u32 s54, s23, {ZBLK}')

    def blockbase(dst, segreg, l):
        E(f's_add_u32 s23, {segreg}, {l * 64}')
        E(f's_mul_i32 s23, s23, {32 * 24576}')
        E('s_add_u32 s23, s23, s53')
        E(f's_cmp_lt_u32 {segreg}, 64')
        E(f's_cselect_b32 {dst}, s23, s54')

    def flag_addr(segreg, l):
        E(f's_min_u32 s23, {segreg}, 63')
        E(f's_add_u32 s23, s23, {l * 64}')
        E('s_lshl_b32 s23, s23, 7')
        E('s_add_u32 s23, s23, s52')
        E('s_lshl_b32 s23, s23, 2')
        E('v_mov_b32 v124, s23')

    def flag_pre(segreg, l):
        flag_addr(segreg, l)
        E(f'global_load_dword v{18 + l}, v124, {WS} offset:{KV_RDY} sc1')

    def flag_sync(segreg, l):
        flag_addr(segreg, l)
        L = poll_begin()
        E(f'global_load_dword v125, v124, {WS} offset:{KV_RDY} sc1')
        E('s_waitcnt vmcnt(0)')
        E('v_cmp_ne_u32 s[40:41], 1, v125')
        poll_end(L, 1)

    def flag_chk(segreg, l):
        Lok = a.newlabel('Lfok')
        E(f's_cmp_ge_u32 {segreg}, 64')
        E(f's_cbranch_scc1 {Lok}')
        E(f'v_cmp_ne_u32 s[40:41], 1, v{18 + l}')
        E('s_cmp_eq_u64 s[40:41], 0')
        E(f's_cbranch_scc1 {Lok}')
        flag_sync(segreg, l)
        a.flush()
        a.label(Lok)

    def load_k(segreg, l):
        kb = 80 + 8 * l
        blockbase('s24', segreg, l)
        E('s_add_u32 s24, s24, 8192')
        E('v_add_u32 v124, s24, v7')
        E('v_add_u32 v125, 4096, v124')
        E(f'global_load_dwordx4 v[{kb}:{kb + 3}], v124, {WS} sc1')
        E(f'global_load_dwordx4 v[{kb + 4}:{kb + 7}], v125, {WS} sc1')

    def load_v(segreg, l):
        vb = 96 + 8 * l
        blockbase('s24', segreg, l)
        E('s_lshl_b32 s25, s20, 10')
        E('s_add_u32 s24, s24, s25')
        E('s_add_u32 s24, s24, 16384')
        E('v_add_u32 v124, s24, v7')
        E(f'global_load_dwordx4 v[{vb}:{vb + 3}], v124, {WS} sc1')
        E(f'global_load_dwordx4 v[{vb + 4}:{vb + 7}], v124, {WS} offset:1024 sc1')

    def mem_flag(treg):
        E(f's_lshl_b32 s23, {treg}, 7')
        E('s_add_u32 s23, s23, s52')
        E('s_lshl_b32 s23, s23, 2')
        E('v_mov_b32 v124, s23')
        E('v_mov_b32 v125, 1')
        E('v_add_u32 v124, %d, v124' % MEM_RDY)
        E(f'global_store_dword v124, v125, {WS} sc1')

    E('s_mov_b32 s35, 0')
    E(f's_sub_u32 s36, s35, {LAG}')
    flag_sync('s35', 0)
    load_k('s35', 0)
    load_k('s36', 1)
    E('s_mov_b32 s35, 1')
    E(f's_sub_u32 s36, s35, {LAG}')
    flag_pre('s35', 0)
    flag_pre('s36', 1)
    E('s_waitcnt vmcnt(0)')
    a.flush()
    stamp('s94', 3)
    E('s_mov_b32 s39, 95')
    a.label('Lchain_step')

    class Rec:
        def __init__(self):
            self.items = []

        def __enter__(self):
            global E
            self.old = E
            E = self.items.append
            return self.items

        def __exit__(self, *x):
            global E
            E = self.old

    def popper(stream):
        def pop(n):
            for _ in range(n):
                if not stream:
                    return
                it = stream.pop(0)
                if callable(it):
                    it()
                else:
                    E(it)
        return pop
    barrier()
    stamp('s30', 0)
    marks = {}
    with Rec() as S1:
        E(f's_sub_u32 s36, s30, {LAG}')
        load_v('s30', 0)
        load_v('s36', 1)
        S1.append(lambda: marks.__setitem__('V', a.nvm))
        mem_flag('s39')
        E('s_lshl_b32 s23, s30, 5')
        E('s_add_u32 s23, s23, s21')
        E('s_lshl_b32 s23, s23, 13')
        E('s_lshl_b32 s24, s20, 10')
        E('s_add_u32 s23, s23, s24')
        E(f's_add_u32 s33, s23, {MEMKV}')
        E('s_add_u32 s31, s30, 1')
        E('s_and_b32 s31, s31, 1')
    pop = popper(S1)

    def rd(ks):
        E(f'ds_read_b128 v[{48 + 4 * (ks % 8)}:{51 + 4 * (ks % 8)}], v{3 + ks % 4} offset:{(ks // 4) * 256}')
    for ks in range(8):
        rd(ks)
    for ks in range(16):
        E(f's_waitcnt lgkmcnt({min(7, 15 - ks)})')
        mf = f'v[{48 + 4 * (ks % 8)}:{51 + 4 * (ks % 8)}]'
        for m in range(2):
            for T in range(2):
                acc = f'v[{24 + 8 * m + 4 * T}:{27 + 8 * m + 4 * T}]'
                E(f'v_mfma_f32_16x16x32_bf16 {acc}, {wfrag(m, T, ks)}, {mf}, {acc if ks else 0}')
                pop(1)
        if ks + 8 < 16:
            rd(ks + 8)
    pop(1000)
    stamp('s30', 1)
    E('v_add_u32 v124, s33, v7')
    for T in range(2):
        for j in range(2):
            E(f'v_cvt_pk_bf16_f32 v{112 + 2 * T + j}, v{24 + 4 * T + 2 * j}, v{25 + 4 * T + 2 * j}')
            E(f'v_cvt_pk_bf16_f32 v{116 + 2 * T + j}, v{32 + 4 * T + 2 * j}, v{33 + 4 * T + 2 * j}')
    for c in range(2):
        for kt in range(2):
            kb = 80 + 8 * c + 4 * kt
            d = 48 + 8 * c + 4 * kt
            E(f'v_mfma_f32_16x16x32_bf16 v[{d}:{d + 3}], v[{kb}:{kb + 3}], v[112:115], 0')
    E('v_mfma_f32_16x16x32_bf16 v[76:79], v[116:119], v[112:115], 0')
    E(f'global_store_dwordx4 v124, v[116:119], {WS} sc1')
    E('s_add_u32 s35, s30, 1')
    E(f's_sub_u32 s36, s35, {LAG}')
    for k in range(8):
        E(f'v_cndmask_b32 v{68 + k}, v{48 + k}, v{56 + k}, s[44:45]')
    for b in range(3):
        E(f'ds_write_b128 v9, v[{68 + 4 * b}:{71 + 4 * b}] offset:{b * 1024}')
    barrier()
    stamp('s30', 2)
    SR = list(range(112, 120)) + list(range(76, 80))
    seqs = {}

    def xs_reads(half):
        def f():
            for ww in range(2):
                for b in range(3):
                    r = (24 if ww == 0 else 64) + 4 * b
                    E(f'ds_read_b128 v[{r}:{r + 3}], v21 offset:{(2 * half + ww) * 3072 + b * 1024}')
            seqs[half] = a.nds
        return f
    xs_reads(0)()
    fseq = {}

    def rd2(ks):
        E(f'ds_read_b128 v[{48 + 4 * (ks % 4)}:{51 + 4 * (ks % 4)}], v{3 + ks % 4} offset:{(ks // 4) * 256}')
        fseq[ks] = a.nds
    for ks in range(4):
        rd2(ks)
    flag_chk('s35', 0)
    flag_chk('s36', 1)
    with Rec() as S2:
        load_k('s35', 0)
        S2.append(lambda: a.wait_ds(seqs[0]))
        for k in range(0, 12, 2):
            E(f'v_pk_add_f32 v[{SR[k]}:{SR[k] + 1}], v[{24 + k}:{25 + k}], v[{64 + k}:{65 + k}]')
        S2.append(xs_reads(1))
        load_k('s36', 1)
        E('s_add_u32 s35, s30, 2')
        E(f's_sub_u32 s36, s35, {LAG}')
        flag_pre('s35', 0)
        flag_pre('s36', 1)
        E('v_mov_b32 v124, 0xf149f2ca')
        S2.append(lambda: a.wait_ds(seqs[1]))
        for k in range(0, 12, 2):
            E(f'v_pk_add_f32 v[{24 + k}:{25 + k}], v[{24 + k}:{25 + k}], v[{64 + k}:{65 + k}]')
        for k in range(0, 12, 2):
            E(f'v_pk_add_f32 v[{SR[k]}:{SR[k] + 1}], v[{SR[k]}:{SR[k] + 1}], v[{24 + k}:{25 + k}]')
        for k in range(4):
            E(f'v_cndmask_b32 v{SR[8 + k]}, v124, v{SR[8 + k]}, s[46:47]')
        for it in softmax_list(SR, 124):
            E(it)
        for j in range(4):
            E(f'v_cvt_pk_bf16_f32 v{24 + j}, v{SR[2 * j]}, v{SR[2 * j + 1]}')
        for j in range(2):
            E(f'v_cvt_pk_bf16_f32 v{36 + j}, v{SR[8 + 2 * j]}, v{SR[9 + 2 * j]}')
        for j in range(4):
            E(f'v_cndmask_b32 v{28 + j}, v{24 + j}, 0, s[44:45]')
            E(f'v_cndmask_b32 v{32 + j}, 0, v{24 + j}, s[44:45]')
    pop = popper(S2)
    per = (len(S2) + 31) // 32
    for ks in range(16):
        a.wait_ds(fseq[ks])
        mf = f'v[{48 + 4 * (ks % 4)}:{51 + 4 * (ks % 4)}]'
        for T in range(2):
            acc = f'v[{40 + 4 * T}:{43 + 4 * T}]'
            E(f'v_mfma_f32_16x16x32_bf16 {acc}, {mf}, {wfrag(2, T, ks)}, {acc if ks else 0}')
            pop(per)
        if ks + 4 < 16:
            rd2(ks + 4)
    pop(1000)
    SETS = (48, 24, 64)

    def rdwo(i):
        st = SETS[i % 3]
        for ks in range(4):
            E(f'ds_read_b128 v[{st + 4 * ks}:{st + 3 + 4 * ks}], v{22 + ks // 2} offset:{(ks % 2) * 32768 + i * 1024}')
        seqs['wo', i] = a.nds
    rdwo(0)
    for T in range(2):
        for j in range(2):
            E(f'v_cvt_pk_bf16_f32 v{120 + 2 * T + j}, v{40 + 4 * T + 2 * j}, v{41 + 4 * T + 2 * j}')
    E('v_add_u32 v124, s33, v7')
    E('v_add_u32 v124, 4096, v124')
    a.wait_vm(marks['V'])
    for et in range(2):
        o = f'v[{64 + 4 * et}:{67 + 4 * et}]'
        E(f'v_mfma_f32_16x16x32_bf16 {o}, v[{96 + 4 * et}:{99 + 4 * et}], v[28:31], 0')
    for et in range(2):
        o = f'v[{64 + 4 * et}:{67 + 4 * et}]'
        E(f'v_mfma_f32_16x16x32_bf16 {o}, v[{104 + 4 * et}:{107 + 4 * et}], v[32:35], {o}')
    for et in range(2):
        o = f'v[{40 + 4 * et}:{43 + 4 * et}]'
        E(f'v_mfma_f32_16x16x16_bf16 {o}, v[{120 + 2 * et}:{121 + 2 * et}], v[36:37], 0')
    E(f'global_store_dwordx4 v124, v[120:123], {WS} sc1')
    for k in range(0, 8, 2):
        E(f'v_pk_add_f32 v[{64 + k}:{65 + k}], v[{64 + k}:{65 + k}], v[{40 + k}:{41 + k}]')
    for et in range(2):
        for j in range(2):
            E(f'v_cvt_pk_bf16_f32 v{72 + 2 * et + j}, v{64 + 4 * et + 2 * j}, v{65 + 4 * et + 2 * j}')
    E('ds_write_b128 v20, v[72:75]')
    barrier()
    stamp('s30', 3)
    for ks in range(4):
        E(f'ds_read_b128 v[{96 + 4 * ks}:{99 + 4 * ks}], v21 offset:{XO_REL + ks * 1024}')
    rdwo(1)
    stamp('s30', 4)

    def op_store(i):
        acc = 40 + 4 * (i % 2)
        pk = 124 + 2 * (i % 2)
        for j in range(2):
            E(f'v_cvt_pk_bf16_f32 v{pk + j}, v{acc + 2 * j}, v{acc + 2 * j + 1}')
        for j in range(2):
            E(f'v_and_or_b32 v{pk + j}, v{pk + j}, v10, s31')
        E(f'v_add_u32 v{acc}, {i * 16384}, v11')
        E(f'global_store_dwordx2 v{acc}, v[{pk}:{pk + 1}], {WS}')
    for i in range(8):
        if i + 2 < 8:
            rdwo(i + 2)
        a.wait_ds(seqs['wo', max(i, 1)] if i < 1 else seqs['wo', i])
        st = SETS[i % 3]
        acc = 40 + 4 * (i % 2)
        for ks in range(4):
            E(f'v_mfma_f32_16x16x32_bf16 v[{acc}:{acc + 3}], v[{st + 4 * ks}:{st + 3 + 4 * ks}], v[{96 + 4 * ks}:{99 + 4 * ks}], {f"v[{acc}:{acc + 3}]" if ks else 0}')
        if i > 0:
            op_store(i - 1)
    op_store(7)
    stamp('s30', 5)
    L = poll_begin()
    E('v_add_u32 v124, 4096, v12')
    E('v_add_u32 v125, 8192, v12')
    E('v_add_u32 v126, 12288, v12')
    for i in range(8):
        ar = ('v12', 'v124', 'v125', 'v126')[i // 2]
        E(f'global_load_dwordx2 v[{48 + 2 * i}:{49 + 2 * i}], {ar}, {WS} offset:{(i % 2) * 2048} sc1')
    E('s_waitcnt vmcnt(0)')
    E('v_and_b32 v124, v48, v50')
    E('v_or3_b32 v125, v48, v50, v52')
    for k in (52, 54, 56, 58, 60, 62):
        E(f'v_and_b32 v124, v124, v{k}')
    E('v_or3_b32 v125, v125, v54, v56')
    E('v_or3_b32 v125, v125, v58, v60')
    E('v_or_b32 v125, v125, v62')
    E('v_and_b32 v124, 1, v124')
    E('v_and_b32 v125, 1, v125')
    E('v_cmp_ne_u32 s[40:41], s31, v124')
    E('v_cmp_ne_u32 s[42:43], s31, v125')
    E('s_or_b64 s[40:41], s[40:41], s[42:43]')
    poll_end(L, 2)
    stamp('s30', 6)
    stampval('s30', 10, 's90')
    for i in range(8):
        for j in range(2):
            r = 48 + 2 * i + j
            if i == 0:
                E(f'v_lshlrev_b32 v{24 + 2 * j}, 16, v{r}')
                E(f'v_and_b32 v{25 + 2 * j}, 0xffff0000, v{r}')
            else:
                t = 28 + 2 * j
                E(f'v_lshlrev_b32 v{t}, 16, v{r}')
                E(f'v_and_b32 v{t + 1}, 0xffff0000, v{r}')
                E(f'v_pk_add_f32 v[{24 + 2 * j}:{25 + 2 * j}], v[{24 + 2 * j}:{25 + 2 * j}], v[{t}:{t + 1}]')
    for j in range(4):
        xlane_reduce('v_add_f32', 24 + j, 28 + j)
    E('s_add_u32 s32, s30, 1')
    for j in range(4):
        E(f'v_cvt_pk_bf16_f32 v{24 + j}, v{24 + j}, v{24 + j}')
        E(f'v_and_b32 v{24 + j}, 0xffff0000, v{24 + j}')
    Lo = a.newlabel('Lov')
    E(f's_cmp_gt_u32 s32, {LAG}')
    E(f's_cbranch_scc1 {Lo}')
    for j in range(2):
        E(f'v_lshlrev_b32 v124, 16, v{16 + j}')
        E(f'v_and_b32 v125, 0xffff0000, v{16 + j}')
        E(f'v_cndmask_b32 v{24 + 2 * j}, v{24 + 2 * j}, v124, s[50:51]')
        E(f'v_cndmask_b32 v{25 + 2 * j}, v{25 + 2 * j}, v125, s[50:51]')
    a.flush()
    a.label(Lo)
    for j in range(4):
        E(f'v_or_b32 v{24 + j}, s32, v{24 + j}')
    E('s_mov_b64 exec, 0xffff')
    E(f'global_store_dwordx4 v13, v[24:27], {WS}')
    E('s_mov_b64 exec, -1')
    E(f's_cmp_ge_u32 s32, {NSTEP}')
    E('s_cbranch_scc1 Lchain_done')
    stamp('s30', 7)
    L = poll_begin()
    for i in range(8):
        E(f'global_load_dwordx4 v[{48 + 4 * i}:{51 + 4 * i}], v{14 + i // 4}, {WS} offset:{(i % 4) * 1024} sc1')
    E('s_waitcnt vmcnt(0)')
    E('v_and_b32 v124, v48, v52')
    E('v_or3_b32 v125, v48, v52, v56')
    for k in (56, 60, 64, 68, 72, 76):
        E(f'v_and_b32 v124, v124, v{k}')
    E('v_or3_b32 v125, v125, v60, v64')
    E('v_or3_b32 v125, v125, v68, v72')
    E('v_or_b32 v125, v125, v76')
    E('v_and_b32 v124, 0xffff, v124')
    E('v_and_b32 v125, 0xffff, v125')
    E('v_cmp_ne_u32 s[40:41], s32, v124')
    E('v_cmp_ne_u32 s[42:43], s32, v125')
    E('s_or_b64 s[40:41], s[40:41], s[42:43]')
    poll_end(L, 3)
    stamp('s30', 8)
    stampval('s30', 11, 's90')
    E('s_mov_b32 s23, 0x07060302')
    for i in range(8):
        E(f'v_perm_b32 v{24 + 2 * i}, v{49 + 4 * i}, v{48 + 4 * i}, s23')
        E(f'v_perm_b32 v{25 + 2 * i}, v{51 + 4 * i}, v{50 + 4 * i}, s23')
        E(f'v_xor_b32 v124, {i << 5}, v8')
        E(f'ds_write_b64 v124, v[{24 + 2 * i}:{25 + 2 * i}]')
    E('s_mov_b32 s39, s30')
    E('s_mov_b32 s30, s32')
    a.flush()
    E('s_branch Lchain_step')
    a.label('Lchain_done')
    mem_flag('s30')
    E('s_waitcnt vmcnt(0)')
    E('s_endpgm')


def make_tables(nteams, k1, k2):
    items = []
    for p in range(32):
        items.append((2 * p + k1, 0, p))
        items.append((2 * p + LAG + k2, 1, p))
    items.sort()
    tabs = [[] for _ in range(nteams)]
    for i, (k, l, p) in enumerate(items):
        tabs[i % nteams].append(l * 32 + p)
    return tabs


def table_ptr(label, first_xcc):
    E('s_getpc_b64 s[54:55]')
    a.label('Lpc' + label)
    E(f's_add_u32 s54, s54, {label} - Lpc{label}')
    E('s_addc_u32 s55, s55, 0')
    E(f's_sub_u32 s23, s22, {first_xcc}')
    E(f's_mul_i32 s23, s23, {4 * 64}')
    E('s_add_u32 s54, s54, s23')
    E('s_addc_u32 s55, s55, 0')


def gen_A():
    tabs = make_tables(2, -8, -4)
    a.label('LroleA')
    E(f's_load_dwordx2 s[12:13], s[0:1], {KA["wq"]}')
    E(f's_load_dwordx2 s[14:15], s[0:1], {KA["wk"]}')
    E(f's_load_dwordx2 s[16:17], s[0:1], {KA["wv"]}')
    E('s_waitcnt lgkmcnt(0)')
    lane_consts()
    load_wqkv()
    stamp('s94', 1)
    XN = 0
    frag_bases(XN)
    table_ptr('Ltab_A', 1)
    E('s_mov_b32 s30, 0')
    E('s_mul_i32 s53, s21, 24576')
    E('s_lshl_b32 s23, s20, 10')
    E('s_add_u32 s53, s53, s23')
    E(f's_add_u32 s53, s53, {QKV}')
    E('s_lshl_b32 s52, s21, 2')
    E('s_add_u32 s52, s52, s20')
    a.flush()
    a.label('LA_item')
    E('s_lshl_b32 s23, s30, 2')
    E('s_load_dword s31, s[54:55], s23')
    E('s_waitcnt lgkmcnt(0)')
    E('s_cmp_ge_u32 s31, 64')
    E('s_cbranch_scc1 LA_done')
    stamp('s30', 0)
    E('s_and_b32 s32, s31, 31')
    E('s_lshl_b32 s33, s32, 16')
    E('s_lshl_b32 s31, s31, 1')
    E('s_cmp_ge_u32 s31, 64')
    E('s_cbranch_scc1 LA_l2')
    layernorm64(XIN, 's33', XN)
    a.flush()
    E('s_branch LA_ln_done')
    a.label('LA_l2')
    E('s_lshl_b32 s23, s32, 9')
    E(f's_add_u32 s23, s23, {X2_RDY}')
    E('v_lshlrev_b32 v124, 3, v0')
    E('v_add_u32 v124, s23, v124')
    L = poll_begin()
    E(f'global_load_dwordx2 v[24:25], v124, {WS} sc1')
    E('s_waitcnt vmcnt(0)')
    E('v_and_b32 v24, v24, v25')
    E('v_cmp_ne_u32 s[40:41], 1, v24')
    poll_end(L, 4)
    E(f's_add_u32 s33, s33, {X2}')
    layernorm64(WS, 's33', XN)
    a.flush()
    a.label('LA_ln_done')
    barrier()
    stamp('s30', 1)

    def kvflag(sg):
        E(f's_add_u32 s23, s31, {sg}')
        E('s_lshl_b32 s23, s23, 7')
        E('s_add_u32 s23, s23, s52')
        E('s_lshl_b32 s23, s23, 2')
        E('v_mov_b32 v124, s23')
        E('v_mov_b32 v125, 1')
        E(f'global_store_dword v124, v125, {WS} offset:{KV_RDY} sc1')
    seq0 = None
    for sg in range(2):
        def rd(ks):
            for rt in range(2):
                r = 72 + 8 * (ks % 4) + 4 * rt
                E(f'ds_read_b128 v[{r}:{r + 3}], v{3 + ks % 4} offset:{sg * 32768 + rt * 16384 + (ks // 4) * 256}')
        for ks in range(4):
            rd(ks)
        for ks in range(16):
            E(f's_waitcnt lgkmcnt({min(6, 2 * (15 - ks))})')
            for rt in range(2):
                r = 72 + 8 * (ks % 4) + 4 * rt
                mf = f'v[{r}:{r + 3}]'
                for m in range(2):
                    for T in range(2):
                        ar = 24 + 16 * m + 8 * rt + 4 * T
                        acc = f'v[{ar}:{ar + 3}]'
                        E(f'v_mfma_f32_16x16x32_bf16 {acc}, {wfrag(m, T, ks)}, {mf}, {acc if ks else 0}')
                for T in range(2):
                    ar = 56 + 8 * rt + 4 * T
                    acc = f'v[{ar}:{ar + 3}]'
                    E(f'v_mfma_f32_16x16x32_bf16 {acc}, {mf}, {wfrag(2, T, ks)}, {acc if ks else 0}')
            if ks + 4 < 16:
                rd(ks + 4)
            if sg == 1 and ks == 7:
                a.wait_vm(seq0)
                kvflag(0)
        E(f's_add_u32 s23, s31, {sg}')
        E(f's_mul_i32 s23, s23, {32 * 24576}')
        E('s_add_u32 s23, s23, s53')
        E('v_add_u32 v22, s23, v7')
        for m in range(2):
            for rt in range(2):
                d = 104 + 8 * m + 4 * rt
                for T in range(2):
                    for j in range(2):
                        ar = 24 + 16 * m + 8 * rt + 4 * T + 2 * j
                        E(f'v_cvt_pk_bf16_f32 v{d + 2 * T + j}, v{ar}, v{ar + 1}')
                E(f'v_add_u32 v23, {m * 8192 + rt * 4096}, v22')
                E(f'global_store_dwordx4 v23, v[{d}:{d + 3}], {WS} sc1')
        E('s_lshl_b32 s24, s20, 10')
        E('v_add_u32 v22, s24, v22')
        E('v_add_u32 v22, 16384, v22')
        for T in range(2):
            d = 16 + 4 * T if False else 120 - 0
            d = (120, 8)[T]
            for rt in range(2):
                for j in range(2):
                    ar = 56 + 8 * rt + 4 * T + 2 * j
                    E(f'v_cvt_pk_bf16_f32 v{d + 2 * rt + j}, v{ar}, v{ar + 1}')
            E(f'global_store_dwordx4 v22, v[{d}:{d + 3}], {WS} offset:{T * 1024} sc1')
        seq0 = a.nvm
    stamp('s30', 2)
    E('s_waitcnt vmcnt(0)')
    kvflag(1)
    stamp('s30', 3)
    E('s_add_u32 s30, s30, 1')
    E('s_barrier')
    a.flush()
    E('s_branch LA_item')
    a.label('LA_done')
    E('s_waitcnt vmcnt(0)')
    E('s_endpgm')
    return tabs


def team_consts():
    E('s_lshl_b32 s23, s56, 21')
    E(f's_add_u32 s23, s23, {BPART}')
    E('s_lshl_b32 s24, s20, 19')
    E('s_add_u32 s24, s24, s23')
    E('s_lshl_b32 s25, s21, 11')
    E('s_add_u32 s24, s24, s25')
    E('v_add_u32 v11, s24, v7')
    E('s_lshl_b32 s24, s21, 16')
    E('s_add_u32 s24, s24, s23')
    E('s_lshr_b32 s25, s20, 1')
    E('s_lshl_b32 s25, s25, 10')
    E('s_add_u32 s24, s24, s25')
    E('s_and_b32 s25, s20, 1')
    E('s_lshl_b32 s25, s25, 9')
    E('s_add_u32 s24, s24, s25')
    E('v_lshrrev_b32 v24, 5, v0')
    E('v_and_b32 v25, 31, v0')
    E('v_lshlrev_b32 v25, 4, v25')
    E('v_lshl_add_u32 v25, v24, 11, v25')
    E('v_add_u32 v12, s24, v25')
    E('s_lshr_b32 s25, s20, 1')
    E('s_lshl_b32 s25, s25, 5')
    E('v_lshl_add_u32 v26, v24, 4, v1')
    E('v_add_u32 v26, s25, v26')
    E('v_lshlrev_b32 v26, 10, v26')
    E('v_and_b32 v27, 1, v2')
    E('s_and_b32 s25, s20, 1')
    E('s_lshl_b32 s25, s25, 4')
    E('s_lshl_b32 s24, s21, 5')
    E('s_add_u32 s25, s25, s24')
    E('v_lshl_add_u32 v26, v27, 3, v26')
    E('v_add_u32 v13, s25, v26')
    E('v_cmp_eq_u32 s[58:59], 1, v24')
    E('s_lshl_b32 s23, s56, 7')
    E(f's_add_u32 s57, s23, {PF}')
    E('s_lshl_b32 s23, s56, 9')
    E(f's_add_u32 s60, s23, {DONE}')


def done_pre():
    E('v_lshlrev_b32 v124, 3, v0')
    E('v_add_u32 v124, s60, v124')
    E(f'global_load_dwordx2 v[16:17], v124, {WS} sc1')


def wait_done(code):
    Lok = a.newlabel('Ldok')
    E('s_sub_u32 s23, s34, 1')
    E('v_min_u32 v16, v16, v17')
    E('v_cmp_gt_u32 s[40:41], s23, v16')
    E('s_cmp_eq_u64 s[40:41], 0')
    E(f's_cbranch_scc1 {Lok}')
    E('v_lshlrev_b32 v124, 3, v0')
    E('v_add_u32 v124, s60, v124')
    L = poll_begin()
    E(f'global_load_dwordx2 v[126:127], v124, {WS} sc1')
    E('s_waitcnt vmcnt(0)')
    E('v_min_u32 v126, v126, v127')
    E('v_cmp_gt_u32 s[40:41], s23, v126')
    poll_end(L, code)
    a.flush()
    a.label(Lok)


def publish_and_reduce(nprod, code, producer_mask_label=None):
    E('s_waitcnt vmcnt(0)')
    E('s_barrier')
    E('s_lshl_b32 s23, s21, 2')
    E('s_add_u32 s23, s23, s57')
    E('v_mov_b32 v124, s23')
    E('v_mov_b32 v125, s34')
    E(f'global_store_dword v124, v125, {WS}')
    if producer_mask_label:
        a.flush()
        a.label(producer_mask_label)
    E('v_and_b32 v124, 31, v0')
    E(f'v_min_u32 v124, {nprod - 1}, v124')
    E('v_lshlrev_b32 v124, 2, v124')
    E('v_add_u32 v124, s57, v124')
    L = poll_begin()
    E(f'global_load_dword v125, v124, {WS} sc1')
    E('s_waitcnt vmcnt(0)')
    E('v_cmp_gt_u32 s[40:41], s34, v125')
    poll_end(L, code)
    nl = nprod // 2
    sq = []
    for i in range(nl):
        E(f'v_add_u32 v124, {i * 4096}, v12')
        E(f'global_load_dwordx4 v[{40 + 4 * i}:{43 + 4 * i}], v124, {WS} sc1')
        sq.append(a.nvm)
    for i in range(nl):
        a.wait_vm(sq[i])
        for j in range(4):
            r = 40 + 4 * i + j
            if i == 0:
                E(f'v_lshlrev_b32 v{24 + 2 * j}, 16, v{r}')
                E(f'v_and_b32 v{25 + 2 * j}, 0xffff0000, v{r}')
            else:
                E(f'v_lshlrev_b32 v124, 16, v{r}')
                E(f'v_and_b32 v125, 0xffff0000, v{r}')
                E(f'v_pk_add_f32 v[{24 + 2 * j}:{25 + 2 * j}], v[{24 + 2 * j}:{25 + 2 * j}], v[124:125]')
    E('s_lshl_b32 s23, s52, 2')
    E('s_add_u32 s23, s23, s60')
    E('v_mov_b32 v124, s23')
    E('v_mov_b32 v125, s34')
    E(f'global_store_dword v124, v125, {WS}')
    for k in range(8):
        E(f'v_mov_b32 v{32 + k}, v{24 + k}')
        E(f'v_permlane32_swap_b32 v{24 + k}, v{32 + k}')
        E(f'v_add_f32 v{24 + k}, v{24 + k}, v{32 + k}')
    for k in range(4):
        E(f'v_cndmask_b32 v{24 + k}, v{24 + k}, v{28 + k}, s[58:59]')


def partial_store(i, accs):
    for rtp in range(2):
        for h2 in range(2):
            ar = accs[2 * rtp + h2]
            for j in range(2):
                E(f'v_cvt_pk_bf16_f32 v{104 + 4 * rtp + 2 * h2 + j}, v{ar + 2 * j}, v{ar + 2 * j + 1}')
    E(f'v_add_u32 v124, {i * 65536}, v11')
    E(f'global_store_dwordx4 v124, v[104:107], {WS}')
    E(f'global_store_dwordx4 v124, v[108:111], {WS} offset:1024')


def gen_B():
    a.label('LroleB')
    E(f's_load_dwordx2 s[18:19], s[0:1], {KA["wo"]}')
    E('s_waitcnt lgkmcnt(0)')
    lane_consts()
    STR = 1040
    E('s_lshl_b32 s23, s21, 17')
    E('s_lshl_b32 s24, s20, 15')
    E('s_add_u32 s23, s23, s24')
    E('v_add_u32 v24, s23, v7')
    E(f's_mul_i32 s24, s20, {32 * STR}')
    E('v_add_u32 v25, s24, v7')
    for b in range(4):
        E(f'v_add_u32 v26, {b * 8192}, v24')
        E(f'v_add_u32 v27, {b * 8192 + 4096}, v24')
        for i in range(8):
            E(f'global_load_dwordx4 v[{32 + 4 * i}:{35 + 4 * i}], v{26 + i // 4}, s[18:19] offset:{(i % 4) * 1024}')
        for i in range(8):
            E(f's_waitcnt vmcnt({7 - i})')
            E(f'ds_write_b128 v25, v[{32 + 4 * i}:{35 + 4 * i}] offset:{(b * 8 + i) * STR}')
    barrier()
    E('v_lshrrev_b32 v26, 2, v1')
    E('v_lshl_add_u32 v26, v2, 2, v26')
    E(f'v_mul_u32_u24 v26, {STR}, v26')
    E('v_and_b32 v27, 3, v1')
    E('v_lshl_add_u32 v26, v27, 3, v26')
    E('s_lshl_b32 s24, s20, 8')
    E('v_add_u32 v26, s24, v26')
    E(f'v_add_u32 v27, {64 * STR}, v26')
    for ni in range(8):
        for ks in range(4):
            r = 128 + (ni * 4 + ks) * 4
            off = (ks % 2) * 32 * STR + ni * 32
            E(f'ds_read_b64_tr_b16 v[{r}:{r + 1}], v{26 + ks // 2} offset:{off}')
            E(f'ds_read_b64_tr_b16 v[{r + 2}:{r + 3}], v{26 + ks // 2} offset:{off + 16 * STR}')
    barrier()
    E('s_sub_u32 s61, s22, 3')
    E('s_mov_b32 s56, s61')
    E('s_lshl_b32 s52, s21, 2')
    E('s_add_u32 s52, s52, s20')
    team_consts()
    E('s_and_b32 s23, s20, 1')
    E('s_lshl_b32 s23, s23, 4')
    E('v_add_u32 v14, s23, v1')
    E('v_lshlrev_b32 v24, 2, v2')
    E('v_sub_u32 v14, v14, v24')
    E('v_lshrrev_b32 v24, 1, v2')
    E('v_cmp_eq_u32 s[46:47], s61, v24')
    E('s_lshl_b32 s23, s20, 12')
    E('v_add_u32 v20, s23, v7')
    E('s_mov_b32 s34, 1')
    a.flush()
    a.label('LB_item')
    stamp('s34', 0)
    E('s_sub_u32 s35, s34, 1')
    E('s_lshl_b32 s36, s35, 1')
    E('s_lshr_b32 s23, s20, 1')
    E('s_add_u32 s36, s36, s23')
    E(f's_mul_i32 s37, s61, {LAG}')
    E('s_add_u32 s37, s37, s36')
    E('s_lshl_b32 s38, s61, 6')
    E('s_add_u32 s38, s38, s36')
    E('s_lshl_b32 s23, s38, 9')
    E('s_lshl_b32 s24, s21, 4')
    E('s_add_u32 s23, s23, s24')
    E('s_lshl_b32 s25, s37, 9')
    E('s_add_u32 s25, s25, s24')
    E(f's_add_u32 s25, s25, {MEM_RDY}')
    E('v_mov_b32 v124, s23')
    E('v_mov_b32 v125, s25')
    L = poll_begin()
    E(f'global_load_dwordx4 v[24:27], v124, {WS} offset:{KV_RDY} sc1')
    E(f'global_load_dwordx4 v[28:31], v125, {WS} sc1')
    E('s_waitcnt vmcnt(0)')
    E('v_and_b32 v24, v24, v25')
    E('v_and_b32 v26, v26, v27')
    E('v_and_b32 v28, v28, v29')
    E('v_and_b32 v30, v30, v31')
    E('v_and_b32 v24, v24, v26')
    E('v_and_b32 v28, v28, v30')
    E('v_and_b32 v24, v24, v28')
    E('v_cmp_ne_u32 s[40:41], 1, v24')
    poll_end(L, 5)
    stamp('s34', 1)
    done_pre()
    E('s_lshl_b32 s23, s35, 16')
    E('v_add_u32 v124, s23, v13')
    Lr = a.newlabel('Lres')
    Lr2 = a.newlabel('Lres')
    E('s_cmp_eq_u32 s61, 0')
    E(f's_cbranch_scc0 {Lr}')
    E(f'global_load_dwordx2 v[22:23], v124, {XIN} sc1')
    E(f's_branch {Lr2}')
    a.label(Lr)
    E(f'v_add_u32 v125, {X2}, v124')
    E(f'global_load_dwordx2 v[22:23], v125, {WS} sc1')
    a.label(Lr2)
    E(f's_mul_i32 s23, s38, {32 * 24576}')
    E('s_mul_i32 s24, s21, 24576')
    E('s_add_u32 s23, s23, s24')
    E(f's_add_u32 s23, s23, {QKV}')
    E('v_add_u32 v124, s23, v7')
    E('s_and_b32 s24, s20, 1')
    E('s_lshl_b32 s24, s24, 12')
    E('v_add_u32 v125, s24, v124')
    for ks in range(4):
        E(f'global_load_dwordx4 v[{24 + 4 * ks}:{27 + 4 * ks}], v125, {WS} offset:{ks * 1024} sc1')
    for kt in range(2):
        E(f'v_add_u32 v125, {8192 + kt * 4096}, v124')
        for ks in range(4):
            r = 40 + 16 * kt + 4 * ks
            E(f'global_load_dwordx4 v[{r}:{r + 3}], v125, {WS} offset:{ks * 1024} sc1')
    E('s_lshl_b32 s23, s37, 5')
    E('s_add_u32 s23, s23, s21')
    E('s_lshl_b32 s23, s23, 13')
    E(f's_add_u32 s23, s23, {MEMKV}')
    E('v_add_u32 v126, s23, v7')
    for ks in range(4):
        E(f'global_load_dwordx4 v[{72 + 4 * ks}:{75 + 4 * ks}], v126, {WS} offset:{ks * 1024} sc1')
    for hb in range(2):
        E(f'v_add_u32 v125, {16384 + hb * 4096}, v124')
        for e in range(4):
            r = 16 * hb + 4 * e
            E(f'global_load_dwordx4 a[{r}:{r + 3}], v125, {WS} offset:{e * 1024} sc1')
    E('v_add_u32 v126, 4096, v126')
    for ks in range(4):
        E(f'global_load_dwordx4 a[{32 + 4 * ks}:{35 + 4 * ks}], v126, {WS} offset:{ks * 1024} sc1')
    E('s_waitcnt vmcnt(12)')
    for ks in range(4):
        q = f'v[{24 + 4 * ks}:{27 + 4 * ks}]'
        for kt in range(2):
            r = 40 + 16 * kt + 4 * ks
            d = 88 + 4 * kt
            E(f'v_mfma_f32_16x16x32_bf16 v[{d}:{d + 3}], v[{r}:{r + 3}], {q}, {f"v[{d}:{d + 3}]" if ks else 0}')
        E(f'v_mfma_f32_16x16x32_bf16 v[96:99], v[{72 + 4 * ks}:{75 + 4 * ks}], {q}, {"v[96:99]" if ks else 0}')
    E('v_mov_b32 v124, 0xf149f2ca')
    for kt in range(2):
        for r in range(4):
            E(f'v_cmp_le_i32 vcc, {16 * kt + r}, v14')
            E(f'v_cndmask_b32 v{88 + 4 * kt + r}, v124, v{88 + 4 * kt + r}, vcc')
    for k in range(4):
        E(f'v_cndmask_b32 v{96 + k}, v124, v{96 + k}, s[46:47]')
    softmax12(88, 124)
    for j in range(4):
        E(f'v_cvt_pk_bf16_f32 v{100 + j}, v{88 + 2 * j}, v{89 + 2 * j}')
    for j in range(2):
        E(f'v_cvt_pk_bf16_f32 v{104 + j}, v{96 + 2 * j}, v{97 + 2 * j}')
    E('s_waitcnt vmcnt(0)')
    for et in range(8):
        o = f'v[{24 + 4 * et}:{27 + 4 * et}]'
        E(f'v_mfma_f32_16x16x32_bf16 {o}, a[{4 * et}:{4 * et + 3}], v[100:103], 0')
    for et in range(8):
        o = f'v[{24 + 4 * et}:{27 + 4 * et}]'
        mr = 32 + 4 * (et // 2) + 2 * (et % 2)
        E(f'v_mfma_f32_16x16x16_bf16 {o}, a[{mr}:{mr + 1}], v[104:105], {o}')
    for ks in range(4):
        for T in range(2):
            for j in range(2):
                ar = 24 + 4 * (2 * ks + T) + 2 * j
                E(f'v_cvt_pk_bf16_f32 v{56 + 4 * ks + 2 * T + j}, v{ar}, v{ar + 1}')
        E(f'ds_write_b128 v20, v[{56 + 4 * ks}:{59 + 4 * ks}] offset:{ks * 1024}')
    barrier()
    for rt in range(4):
        for ks in range(4):
            r = 24 + 16 * rt + 4 * ks
            E(f'ds_read_b128 v[{r}:{r + 3}], v7 offset:{rt * 4096 + ks * 1024}')
    stamp('s34', 2)
    wait_done(6)
    stamp('s34', 3)
    E('s_waitcnt lgkmcnt(0)')
    for i in range(8):
        accs = [88 + 4 * rt for rt in range(4)]
        for ks in range(4):
            wr = 128 + (i * 4 + ks) * 4
            for rt in range(4):
                r = 24 + 16 * rt + 4 * ks
                ac = f'v[{accs[rt]}:{accs[rt] + 3}]'
                E(f'v_mfma_f32_16x16x32_bf16 {ac}, v[{wr}:{wr + 3}], v[{r}:{r + 3}], {ac if ks else 0}')
        partial_store(i, accs)
    stamp('s34', 4)
    publish_and_reduce(32, 7)
    stamp('s34', 5)
    E('s_lshl_b32 s23, s35, 16')
    E('v_add_u32 v124, s23, v13')
    final_store(X1, 's61', X1_RDY)
    stamp('s34', 6)
    E('s_add_u32 s34, s34, 1')
    E('s_cmp_le_u32 s34, 32')
    a.flush()
    E('s_cbranch_scc1 LB_item')
    E('s_waitcnt vmcnt(0)')
    E('s_endpgm')


def add_resid():
    for j in range(2):
        E(f'v_cvt_pk_bf16_f32 v{34 + j}, v{24 + 2 * j}, v{25 + 2 * j}')
    for j in range(2):
        E(f'v_lshlrev_b32 v{24 + 2 * j}, 16, v{34 + j}')
        E(f'v_and_b32 v{25 + 2 * j}, 0xffff0000, v{34 + j}')
        E(f'v_lshlrev_b32 v{28 + 2 * j}, 16, v{22 + j}')
        E(f'v_and_b32 v{29 + 2 * j}, 0xffff0000, v{22 + j}')
    for k in range(4):
        E(f'v_add_f32 v{24 + k}, v{24 + k}, v{28 + k}')
    for j in range(2):
        E(f'v_cvt_pk_bf16_f32 v{32 + j}, v{24 + 2 * j}, v{25 + 2 * j}')


def final_store(dst, lreg, rdy):
    add_resid()
    E(f's_lshl_b32 s23, {lreg}, 21')
    E(f's_add_u32 s23, s23, {dst}')
    E('v_add_u32 v125, s23, v124')
    E(f'global_store_dwordx2 v125, v[32:33], {WS} sc1')
    E('s_waitcnt vmcnt(0)')
    E(f's_lshl_b32 s23, {lreg}, 5')
    E('s_add_u32 s23, s23, s35')
    E('s_lshl_b32 s23, s23, 7')
    E('s_add_u32 s23, s23, s52')
    E('s_lshl_b32 s23, s23, 2')
    E(f's_add_u32 s23, s23, {rdy}')
    E('v_mov_b32 v124, s23')
    E('v_mov_b32 v125, 1')
    E(f'global_store_dword v124, v125, {WS} sc1')


def gen_F():
    a.label('LroleF')
    E(f's_load_dwordx2 s[12:13], s[0:1], {KA["wg"]}')
    E(f's_load_dwordx2 s[14:15], s[0:1], {KA["wu"]}')
    E(f's_load_dwordx2 s[16:17], s[0:1], {KA["wd"]}')
    E('s_waitcnt lgkmcnt(0)')
    lane_consts()
    E('s_sub_u32 s56, s22, 3')
    E('s_lshl_b32 s52, s21, 2')
    E('s_add_u32 s52, s52, s20')
    E('s_cmp_ge_u32 s21, 28')
    E('s_cbranch_scc1 LF_wdone')
    STR = 144
    UPO = 512 * STR
    E('v_lshrrev_b32 v24, 3, v0')
    E('s_lshl_b32 s23, s20, 7')
    E('v_add_u32 v24, s23, v24')
    E('v_and_b32 v25, 7, v0')
    E('s_movk_i32 s23, 3584')
    E('v_mul_lo_u32 v26, v24, s23')
    E('v_lshl_add_u32 v26, v25, 4, v26')
    E('s_lshl_b32 s23, s21, 7')
    E('v_add_u32 v26, s23, v26')
    E(f'v_mul_u32_u24 v27, {STR}, v24')
    E('v_lshl_add_u32 v27, v25, 4, v27')
    for mi, ptr in enumerate(('s[12:13]', 's[14:15]')):
        for b in range(2):
            for i in range(8):
                ii = b * 8 + i
                E(f'v_add_u32 v28, {ii * 8 * 3584}, v26')
                E(f'global_load_dwordx4 v[{32 + 4 * i}:{35 + 4 * i}], v28, {ptr}')
            for i in range(8):
                ii = b * 8 + i
                E(f's_waitcnt vmcnt({7 - i})')
                off = ii * 8 * STR
                if mi == 1:
                    E(f'v_add_u32 v28, {UPO}, v27')
                    E(f'ds_write_b128 v28, v[{32 + 4 * i}:{35 + 4 * i}] offset:{off}')
                else:
                    E(f'ds_write_b128 v27, v[{32 + 4 * i}:{35 + 4 * i}] offset:{off}')
    barrier()
    E('v_lshrrev_b32 v26, 2, v1')
    E('v_lshl_add_u32 v26, v2, 3, v26')
    E(f'v_mul_u32_u24 v26, {STR}, v26')
    E('v_and_b32 v27, 3, v1')
    E('v_lshl_add_u32 v26, v27, 3, v26')
    E('s_lshl_b32 s24, s20, 5')
    E('v_add_u32 v26, s24, v26')
    E(f'v_add_u32 v27, {8 * 32 * STR}, v26')
    E(f'v_add_u32 v28, {UPO}, v26')
    E(f'v_add_u32 v29, {UPO + 8 * 32 * STR}, v26')
    for mi in range(2):
        for ks in range(16):
            r = 64 * mi + 4 * ks
            base = 26 + 2 * mi + ks // 8
            off = (ks % 8) * 32 * STR
            E(f'ds_read_b64_tr_b16 a[{r}:{r + 1}], v{base} offset:{off}')
            E(f'ds_read_b64_tr_b16 a[{r + 2}:{r + 3}], v{base} offset:{off + 4 * STR}')
    barrier()
    STR = 1040
    E('s_lshl_b32 s23, s21, 16')
    E('s_lshl_b32 s24, s20, 14')
    E('s_add_u32 s23, s23, s24')
    E('v_add_u32 v24, s23, v7')
    E(f's_mul_i32 s24, s20, {16 * STR}')
    E('v_add_u32 v25, s24, v7')
    for b in range(2):
        E(f'v_add_u32 v26, {b * 8192}, v24')
        E(f'v_add_u32 v27, {b * 8192 + 4096}, v24')
        for i in range(8):
            E(f'global_load_dwordx4 v[{32 + 4 * i}:{35 + 4 * i}], v{26 + i // 4}, s[16:17] offset:{(i % 4) * 1024}')
        for i in range(8):
            E(f's_waitcnt vmcnt({7 - i})')
            E(f'ds_write_b128 v25, v[{32 + 4 * i}:{35 + 4 * i}] offset:{(b * 8 + i) * STR}')
    barrier()
    E('v_lshrrev_b32 v26, 2, v1')
    E('v_lshl_add_u32 v26, v2, 2, v26')
    E(f'v_mul_u32_u24 v26, {STR}, v26')
    E('v_and_b32 v27, 3, v1')
    E('v_lshl_add_u32 v26, v27, 3, v26')
    E('s_lshl_b32 s24, s20, 8')
    E('v_add_u32 v26, s24, v26')
    for ni in range(8):
        for k2 in range(2):
            r = 128 + (ni * 2 + k2) * 4
            off = k2 * 32 * STR + ni * 32
            E(f'ds_read_b64_tr_b16 v[{r}:{r + 1}], v26 offset:{off}')
            E(f'ds_read_b64_tr_b16 v[{r + 2}:{r + 3}], v26 offset:{off + 16 * STR}')
    E('s_waitcnt lgkmcnt(0)')
    a.label('LF_wdone')
    E('s_barrier')
    team_consts()
    XN = 0
    XH = 65536
    frag_bases(XN)
    E('v_lshlrev_b32 v21, 3, v0')
    E(f'v_add_u32 v21, {XH}, v21')
    E('s_lshl_b32 s23, s20, 11')
    E('v_add_u32 v20, s23, v21')
    E('s_mov_b32 s34, 1')
    table_ptr('Ltab_F', 5)
    a.flush()
    a.label('LF_item')
    E('s_lshl_b32 s23, s34, 2')
    E('s_sub_u32 s23, s23, 4')
    E('s_load_dword s31, s[54:55], s23')
    E('s_waitcnt lgkmcnt(0)')
    E('s_cmp_ge_u32 s31, 64')
    E('s_cbranch_scc1 LF_done')
    E('s_and_b32 s35, s31, 31')
    E('s_lshr_b32 s61, s31, 5')
    stamp('s34', 0)
    E('s_lshl_b32 s23, s61, 5')
    E('s_add_u32 s23, s23, s35')
    E('s_lshl_b32 s23, s23, 9')
    E(f's_add_u32 s23, s23, {X1_RDY}')
    E('v_lshlrev_b32 v124, 3, v0')
    E('v_add_u32 v124, s23, v124')
    L = poll_begin()
    E(f'global_load_dwordx2 v[24:25], v124, {WS} sc1')
    E('s_waitcnt vmcnt(0)')
    E('v_and_b32 v24, v24, v25')
    E('v_cmp_ne_u32 s[40:41], 1, v24')
    poll_end(L, 8)
    stamp('s34', 1)
    E('s_lshl_b32 s33, s61, 21')
    E('s_lshl_b32 s23, s35, 16')
    E('s_add_u32 s33, s33, s23')
    E(f's_add_u32 s33, s33, {X1}')
    E('v_add_u32 v125, s33, v13')
    E(f'global_load_dwordx2 v[22:23], v125, {WS} sc1')
    E('s_cmp_ge_u32 s21, 28')
    E('s_cbranch_scc1 LF_cons')
    done_pre()
    layernorm64(WS, 's33', XN)
    barrier()
    stamp('s34', 2)

    def rd(ks):
        for rt in range(4):
            r = 56 + 16 * (ks % 2) + 4 * rt
            E(f'ds_read_b128 v[{r}:{r + 3}], v{3 + ks % 4} offset:{rt * 16384 + (ks // 4) * 256}')
    rd(0)
    rd(1)
    for ks in range(16):
        E(f's_waitcnt lgkmcnt({4 if ks < 15 else 0})')
        for rt in range(4):
            r = 56 + 16 * (ks % 2) + 4 * rt
            for mi in range(2):
                ar = 24 + 16 * mi + 4 * rt
                acc = f'v[{ar}:{ar + 3}]'
                E(f'v_mfma_f32_16x16x32_bf16 {acc}, a[{64 * mi + 4 * ks}:{64 * mi + 4 * ks + 3}], v[{r}:{r + 3}], {acc if ks else 0}')
        if ks + 2 < 16:
            rd(ks + 2)
    E('s_mov_b32 s23, 0x3d372713')
    E('s_mov_b32 s24, 0xc0135761')
    for k in range(0, 16, 2):
        E(f'v_cvt_pk_bf16_f32 v56, v{24 + k}, v{25 + k}')
        E(f'v_cvt_pk_bf16_f32 v57, v{40 + k}, v{41 + k}')
        E(f'v_lshlrev_b32 v{24 + k}, 16, v56')
        E(f'v_and_b32 v{25 + k}, 0xffff0000, v56')
        E(f'v_lshlrev_b32 v{40 + k}, 16, v57')
        E(f'v_and_b32 v{41 + k}, 0xffff0000, v57')
    for k in range(16):
        g = 24 + k
        t = 56 + k
        E(f'v_mul_f32 v{t}, v{g}, v{g}')
        E(f'v_mul_f32 v{t}, s23, v{t}')
        E(f'v_fma_f32 v{t}, v{t}, v{g}, v{g}')
        E(f'v_mul_f32 v{t}, s24, v{t}')
    for k in range(16):
        E(f'v_exp_f32 v{56 + k}, v{56 + k}')
    for k in range(16):
        E(f'v_add_f32 v{56 + k}, 1.0, v{56 + k}')
    for k in range(16):
        E(f'v_rcp_f32 v{56 + k}, v{56 + k}')
    for k in range(16):
        E(f'v_mul_f32 v{24 + k}, v{24 + k}, v{56 + k}')
    for k in range(0, 16, 2):
        E(f'v_cvt_pk_bf16_f32 v56, v{24 + k}, v{25 + k}')
        E(f'v_lshlrev_b32 v{24 + k}, 16, v56')
        E(f'v_and_b32 v{25 + k}, 0xffff0000, v56')
    for k in range(16):
        E(f'v_mul_f32 v{24 + k}, v{24 + k}, v{40 + k}')
    for rt in range(4):
        for j in range(2):
            E(f'v_cvt_pk_bf16_f32 v{56 + 2 * rt + j}, v{24 + 4 * rt + 2 * j}, v{25 + 4 * rt + 2 * j}')
        E(f'ds_write_b64 v20, v[{56 + 2 * rt}:{57 + 2 * rt}] offset:{rt * 512}')
    barrier()
    for rt in range(4):
        for k2 in range(2):
            r = 24 + 8 * rt + 4 * k2
            E(f'ds_read_b64 v[{r}:{r + 1}], v21 offset:{(2 * k2) * 2048 + rt * 512}')
            E(f'ds_read_b64 v[{r + 2}:{r + 3}], v21 offset:{(2 * k2 + 1) * 2048 + rt * 512}')
    stamp('s34', 3)
    wait_done(9)
    E('s_waitcnt lgkmcnt(0)')
    for i in range(8):
        accs = [88 + 4 * rt for rt in range(4)]
        for k2 in range(2):
            wr = 128 + (i * 2 + k2) * 4
            for rt in range(4):
                r = 24 + 8 * rt + 4 * k2
                ac = f'v[{accs[rt]}:{accs[rt] + 3}]'
                E(f'v_mfma_f32_16x16x32_bf16 {ac}, v[{wr}:{wr + 3}], v[{r}:{r + 3}], {ac if k2 else 0}')
        partial_store(i, accs)
    stamp('s34', 4)
    publish_and_reduce(28, 10, 'LF_cons')
    stamp('s34', 5)
    E('s_lshl_b32 s23, s35, 16')
    E('v_add_u32 v124, s23, v13')
    add_resid()
    Lo = a.newlabel('Lfo')
    Lo2 = a.newlabel('Lfo')
    E('s_cmp_eq_u32 s61, 0')
    E(f's_cbranch_scc0 {Lo}')
    E(f'v_add_u32 v125, {X2}, v124')
    E(f'global_store_dwordx2 v125, v[32:33], {WS} sc1')
    E('s_waitcnt vmcnt(0)')
    E('s_lshl_b32 s23, s35, 7')
    E('s_add_u32 s23, s23, s52')
    E('s_lshl_b32 s23, s23, 2')
    E(f's_add_u32 s23, s23, {X2_RDY}')
    E('v_mov_b32 v124, s23')
    E('v_mov_b32 v125, 1')
    E(f'global_store_dword v124, v125, {WS} sc1')
    E(f's_branch {Lo2}')
    a.label(Lo)
    E(f'global_store_dwordx2 v124, v[32:33], {OUT}')
    a.label(Lo2)
    E('s_add_u32 s34, s34, 1')
    a.flush()
    E('s_branch LF_item')
    a.label('LF_done')
    stamp('s94', 5)
    E('s_waitcnt vmcnt(0)')
    E('s_endpgm')


def gen_mega():
    a.lines.append('.globl mega_kernel\n.p2align 8\n.type mega_kernel,@function\nmega_kernel:')
    E('s_cmp_ge_u32 s2, 256')
    E('s_cbranch_scc1 Lmega_exit')
    E(f's_load_dwordx2 s[4:5], s[0:1], {KA["ws"]}')
    E(f's_load_dwordx2 s[6:7], s[0:1], {KA["x"]}')
    E(f's_load_dwordx2 s[8:9], s[0:1], {KA["out"]}')
    E(f's_load_dwordx2 s[10:11], s[0:1], {KA["dbg"]}')
    E('v_lshrrev_b32 v1, 6, v0')
    E('v_readfirstlane_b32 s20, v1')
    E('v_and_b32 v0, 63, v0')
    E('s_getreg_b32 s22, hwreg(HW_REG_XCC_ID)')
    E('s_and_b32 s22, s22, 7')
    E('s_waitcnt lgkmcnt(0)')
    E('s_cmp_lg_u32 s20, 0')
    E('s_cbranch_scc1 Lticket_skip')
    E('s_mov_b64 exec, 1')
    E('s_lshl_b32 s23, s22, 2')
    E('v_mov_b32 v2, s23')
    E('v_mov_b32 v3, 1')
    E(f'global_atomic_add v4, v2, v3, {DBG} sc0 sc1')
    E('v_mov_b32 v5, 0')
    E('s_waitcnt vmcnt(0)')
    E('ds_write_b32 v5, v4')
    E('s_mov_b64 exec, -1')
    a.label('Lticket_skip')
    barrier()
    E('v_mov_b32 v5, 0')
    E('ds_read_b32 v4, v5')
    E('s_waitcnt lgkmcnt(0)')
    E('v_readfirstlane_b32 s21, v4')
    E('s_barrier')
    E('s_cmp_ge_u32 s21, 32')
    E('s_cbranch_scc1 Lmega_exit')
    E('s_mov_b32 s94, 100')
    lane_consts()
    stamp('s94', 0)
    E('s_cmp_eq_u32 s22, 0')
    E('s_cbranch_scc1 Lchain')
    E('s_cmp_le_u32 s22, 2')
    E('s_cbranch_scc1 LroleA')
    E('s_cmp_le_u32 s22, 4')
    E('s_cbranch_scc1 LroleB')
    E('s_branch LroleF')
    a.label('Lmega_exit')
    E('s_endpgm')
    gen_chain()
    tabs = gen_A()
    gen_B()
    gen_F()
    a.lines.append('.p2align 6')
    a.lines.append('Ltab_A:')
    for t in tabs:
        t = t + [255] * (64 - len(t))
        a.lines.append('.long ' + ', '.join(str(x) for x in t))
    a.lines.append('Ltab_F:')
    for t in make_tables(3, 0, 0):
        t = t + [255] * (64 - len(t))
        a.lines.append('.long ' + ', '.join(str(x) for x in t))


HEADER = open('interleave_layers__memory_aug_recurrent_mem_tr__geglu_ffn__prompt.s.ref').read().split('; Override launch')[0]

nwg_init = ZERO_END // 4096
out = HEADER
out += f'; @launch kernel=init_kernel grid=({nwg_init},1,1) block=(256,1,1) lds=0\n'
out += '; @launch kernel=mega_kernel grid=(256,1,1) block=(256,1,1) lds=163840\n'
out += '.amdgcn_target "amdgcn-amd-amdhsa--gfx950"\n.text\n'
gen_init()
gen_mega()
out += a.text()
out += '''.section .rodata,"a"
.p2align 6
.amdhsa_kernel init_kernel
  .amdhsa_next_free_vgpr 8
  .amdhsa_next_free_sgpr 16
  .amdhsa_accum_offset 8
  .amdhsa_group_segment_fixed_size 0
  .amdhsa_kernarg_size 112
  .amdhsa_user_sgpr_count 2
  .amdhsa_user_sgpr_kernarg_segment_ptr 1
  .amdhsa_system_sgpr_workgroup_id_x 1
.end_amdhsa_kernel
.p2align 6
.amdhsa_kernel mega_kernel
  .amdhsa_next_free_vgpr 512
  .amdhsa_next_free_sgpr 102
  .amdhsa_accum_offset 256
  .amdhsa_group_segment_fixed_size 0
  .amdhsa_kernarg_size 112
  .amdhsa_user_sgpr_count 2
  .amdhsa_user_sgpr_kernarg_segment_ptr 1
  .amdhsa_system_sgpr_workgroup_id_x 1
.end_amdhsa_kernel
'''
open(sys.argv[1], 'w').write(out)
print('instructions:', a.ninstr, 'bytes:', len(out))
```

```python
import sys
from asmlib import Asm

LAG = int(sys.argv[2]) if len(sys.argv) > 2 else 10
import os
NSTEP = int(os.environ.get("NSTEP", 64 + LAG))
TMO = int(os.environ.get("TMO", 400000))

KV_RDY = 0x0
MEM_RDY = 0x10000
X1_RDY = 0x20000
X2_RDY = 0x28000
PF = 0x2C000
DONE = 0x2D000
CSLICE = 0x30000
ZBLK = 0x38000
CPART = 0x40000
ZERO_END = 0x140000
MEMKV = 0x200000
X1 = 0x1A00000
X2 = 0x1E00000
BPART = 0x2000000
QKV = 0x3000000

KA = dict(x=0, mem0=8, wq=16, wk=24, wv=32, wo=40, wg=64, wu=72, wd=80, out=88, dbg=96, ws=104)

a = Asm()
E = a


def v(i, n=1):
    return f'v{i}' if n == 1 else f'v[{i}:{i + n - 1}]'


def ag(i, n=1):
    return f'a{i}' if n == 1 else f'a[{i}:{i + n - 1}]'


def s(i, n=1):
    return f's{i}' if n == 1 else f's[{i}:{i + n - 1}]'


WS = 's[4:5]'
XIN = 's[6:7]'
OUT = 's[8:9]'
DBG = 's[10:11]'


def timeout_exit(code):
    sv = a.nvm
    E(f'v_mov_b32 v126, {64 + 4 * code}')
    E(f'v_mov_b32 v127, {0x100 + code}')
    E(f'global_store_dword v126, v127, {DBG}')
    E('s_waitcnt vmcnt(0)')
    E('s_endpgm')
    a.nvm = sv


def poll_begin():
    L = a.newlabel('Lpoll')
    E('s_mov_b32 s90, 0')
    a.flush()
    a.label(L)
    return L


def poll_end(L, code):
    Ld = a.newlabel('Lpd')
    E('s_cmp_eq_u64 s[40:41], 0')
    E(f's_cbranch_scc1 {Ld}')
    E('s_add_u32 s90, s90, 1')
    E(f's_cmp_lt_u32 s90, {TMO}')
    a.flush()
    E(f's_cbranch_scc1 {L}')
    timeout_exit(code)
    a.label(Ld)


DUMP = int(os.environ.get("DUMP", 0))
def dump(slot, r0, n):
    if not DUMP:
        return
    E('s_lshl_b32 s23, s21, 2')
    E('s_add_u32 s23, s23, s20')
    E('s_lshl_b32 s23, s23, 13')
    E(f's_add_u32 s23, s23, {0xA000000 + slot * 0x100000}')
    E('v_add_u32 v127, s23, v7')
    for k in range(n // 4):
        E(f'global_store_dwordx4 v127, v[{r0 + 4 * k}:{r0 + 4 * k + 3}], {WS} offset:{k * 1024}')
    E('s_waitcnt vmcnt(0)')


STAMP = int(os.environ.get("STAMP", 0))
def stamp(idxreg, k):
    if not STAMP:
        return
    E('s_memrealtime s[92:93]')
    E(f's_lshl_b32 s23, {idxreg}, 6')
    E('s_lshl_b32 s24, s22, 16')
    E('s_add_u32 s23, s23, s24')
    E(f's_add_u32 s23, s23, {0xB000000 + 4 * k}')
    E('s_or_b32 s24, s20, s21')
    E('s_cmp_lg_u32 s24, 0')
    E(f's_cselect_b32 s23, {0xB100000}, s23')
    E('v_mov_b32 v126, s23')
    E('s_waitcnt lgkmcnt(0)')
    E('v_mov_b32 v127, s92')
    E(f'global_store_dword v126, v127, {WS}')


def stampval(idxreg, k, sreg):
    if not STAMP:
        return
    L = a.newlabel('Lst')
    E('s_or_b32 s23, s20, s21')
    E('s_cmp_lg_u32 s23, 0')
    E(f's_cbranch_scc1 {L}')
    E(f's_lshl_b32 s23, {idxreg}, 6')
    E('s_lshl_b32 s24, s22, 16')
    E('s_add_u32 s23, s23, s24')
    E(f's_add_u32 s23, s23, {0xB000000 + 4 * k}')
    E('v_mov_b32 v126, s23')
    E(f'v_mov_b32 v127, {sreg}')
    E(f'global_store_dword v126, v127, {WS}')
    a.flush()
    a.label(L)


def barrier():
    E('s_waitcnt lgkmcnt(0)')
    E('s_barrier')


def gen_init():
    a.lines.append('.globl init_kernel\n.p2align 8\n.type init_kernel,@function\ninit_kernel:')
    nwg = ZERO_END // 4096
    E(f's_cmp_ge_u32 s2, {nwg}')
    E('s_cbranch_scc1 Linit_done')
    E(f's_load_dwordx2 s[4:5], s[0:1], {KA["ws"]}')
    E('s_lshl_b32 s3, s2, 12')
    E('v_lshlrev_b32 v1, 4, v0')
    E('v_add_u32 v1, s3, v1')
    E('v_mov_b32 v4, 0')
    E('v_mov_b32 v5, 0')
    E('v_mov_b32 v6, 0')
    E('v_mov_b32 v7, 0')
    E('s_waitcnt lgkmcnt(0)')
    E('global_store_dwordx4 v1, v[4:7], s[4:5]')
    E('s_waitcnt vmcnt(0)')
    a.label('Linit_done')
    E('s_endpgm')
    return nwg


def lane_consts():
    E('v_and_b32 v1, 15, v0')
    E('v_lshrrev_b32 v2, 4, v0')
    E('v_lshlrev_b32 v7, 4, v0')


def frag_bases(region):
    for q in range(4):
        E(f'v_add_u32 v124, {4 * q}, v2')
        E('v_xor_b32 v124, v124, v1')
        E('v_lshlrev_b32 v124, 4, v124')
        E('v_lshl_add_u32 v124, v1, 10, v124')
        E(f'v_add_u32 v{3 + q}, {region}, v124')


def load_wqkv():
    STR = 272
    E('s_lshl_b32 s23, s20, 7')
    E('v_add_u32 v24, s23, v2')
    E('v_lshlrev_b32 v25, 13, v24')
    E('s_lshl_b32 s24, s21, 8')
    E('v_lshl_add_u32 v25, v1, 4, v25')
    E('v_add_u32 v25, s24, v25')
    E(f'v_mul_u32_u24 v26, {STR}, v24')
    E('v_lshl_add_u32 v26, v1, 4, v26')
    E('v_lshrrev_b32 v27, 2, v1')
    E('v_lshl_add_u32 v27, v2, 3, v27')
    E(f'v_mul_u32_u24 v27, {STR}, v27')
    E('v_and_b32 v28, 3, v1')
    E('v_lshlrev_b32 v28, 3, v28')
    E('v_add_u32 v27, v27, v28')
    E('s_lshl_b32 s23, s20, 6')
    E('v_add_u32 v27, s23, v27')
    for q in range(1, 4):
        E(f'v_add_u32 v{27 + q}, {4 * 32 * STR * q}, v27')
    for mi, (ptr, dst) in enumerate((('s[12:13]', ('a', 0)), ('s[14:15]', ('a', 128)), ('s[16:17]', ('v', 128)))):
        for b in range(4):
            for i in range(8):
                ii = b * 8 + i
                E(f'v_add_u32 v31, {ii * 4 * 8192}, v25')
                E(f'global_load_dwordx4 v[{32 + 4 * i}:{35 + 4 * i}], v31, {ptr}')
            for i in range(8):
                ii = b * 8 + i
                E(f's_waitcnt vmcnt({7 - i})')
                E(f'ds_write_b128 v26, v[{32 + 4 * i}:{35 + 4 * i}] offset:{ii * 4 * STR}')
        barrier()
        for T in range(2):
            for ks in range(16):
                base = 27 + ks // 4
                off = (ks % 4) * 32 * STR + T * 32
                r = dst[1] + (T * 16 + ks) * 4
                p = dst[0]
                E(f'ds_read_b64_tr_b16 {p}[{r}:{r + 1}], v{base} offset:{off}')
                E(f'ds_read_b64_tr_b16 {p}[{r + 2}:{r + 3}], v{base} offset:{off + 4 * STR}')
        barrier()


def wfrag(m, T, ks):
    r = (T * 16 + ks) * 4
    if m == 0:
        return f'a[{r}:{r + 3}]'
    if m == 1:
        return f'a[{128 + r}:{128 + r + 3}]'
    return f'v[{128 + r}:{128 + r + 3}]'


def layernorm64(src, voff_sgpr, region, extra_loads=None):
    E('v_lshrrev_b32 v24, 3, v0')
    E('s_lshl_b32 s23, s20, 3')
    E('v_add_u32 v24, s23, v24')
    E('v_and_b32 v25, 7, v0')
    E('v_lshlrev_b32 v26, 10, v24')
    E('v_lshl_add_u32 v26, v25, 4, v26')
    E(f'v_add_u32 v26, {voff_sgpr}, v26')
    E('v_add_u32 v27, 32768, v26')
    hb = (92, 28)
    seq = [[], []]
    for hf in range(2):
        for i in range(8):
            E(f'global_load_dwordx4 v[{hb[hf] + 4 * i}:{hb[hf] + 3 + 4 * i}], v{26 + hf}, {src} offset:{i * 128} sc1')
            seq[hf].append(a.nvm)
    if extra_loads:
        extra_loads()
    E('v_and_b32 v27, 7, v24')
    E('v_xor_b32 v27, v27, v25')
    E('v_lshlrev_b32 v27, 4, v27')
    E('v_lshl_add_u32 v27, v24, 10, v27')
    E('v_bfe_u32 v25, v24, 3, 1')
    E('v_lshl_add_u32 v27, v25, 7, v27')
    E(f'v_add_u32 v27, {region}, v27')
    E('v_xor_b32 v25, 128, v27')

    def red8(r):
        E(f'v_add_f32_dpp v{r}, v{r}, v{r} quad_perm:[1,0,3,2] row_mask:0xf bank_mask:0xf')
        E(f'v_add_f32_dpp v{r}, v{r}, v{r} quad_perm:[2,3,0,1] row_mask:0xf bank_mask:0xf')
        E(f'v_add_f32_dpp v{r}, v{r}, v{r} row_half_mirror row_mask:0xf bank_mask:0xf')
    for hf in range(2):
        for i in range(8):
            a.wait_vm(seq[hf][i])
            for j in range(4):
                src_r = hb[hf] + 4 * i + j
                d = 60 + 8 * i + 2 * j
                E(f'v_lshlrev_b32 v{d}, 16, v{src_r}')
                E(f'v_and_b32 v{d + 1}, 0xffff0000, v{src_r}')
        E('v_pk_add_f32 v[124:125], v[60:61], v[62:63]')
        for k in range(4, 64, 2):
            E(f'v_pk_add_f32 v[124:125], v[124:125], v[{60 + k}:{61 + k}]')
        E('v_add_f32 v124, v124, v125')
        red8(124)
        E('v_mul_f32 v124, 0xbb000000, v124')
        E('v_mov_b32 v125, v124')
        for k in range(0, 64, 2):
            E(f'v_pk_add_f32 v[{60 + k}:{61 + k}], v[{60 + k}:{61 + k}], v[124:125]')
        E('v_pk_mul_f32 v[124:125], v[60:61], v[60:61]')
        for k in range(2, 64, 2):
            E(f'v_pk_fma_f32 v[124:125], v[{60 + k}:{61 + k}], v[{60 + k}:{61 + k}], v[124:125]')
        E('v_add_f32 v124, v124, v125')
        red8(124)
        E('v_mov_b32 v125, 0x3727c5ac')
        E('v_fmac_f32 v125, 0x3b000000, v124')
        E('v_rsq_f32 v124, v125')
        E('v_mov_b32 v125, v124')
        for i in range(8):
            for j in range(4):
                d = 60 + 8 * i + 2 * j
                E(f'v_pk_mul_f32 v[{d}:{d + 1}], v[{d}:{d + 1}], v[124:125]')
                E(f'v_cvt_pk_bf16_f32 v{60 + 4 * i + j}, v{d}, v{d + 1}')
            E(f'ds_write_b128 v{27 if i % 2 == 0 else 25}, v[{60 + 4 * i}:{63 + 4 * i}] offset:{hf * 32768 + (i >> 1) * 256}')


def xlane_reduce(op, r, t):
    E(f'v_mov_b32 v{t}, v{r}')
    E(f'v_permlane16_swap_b32 v{r}, v{t}')
    E(f'{op} v{r}, v{r}, v{t}')
    E(f'v_mov_b32 v{t}, v{r}')
    E(f'v_permlane32_swap_b32 v{r}, v{t}')
    E(f'{op} v{r}, v{r}, v{t}')


SC_LOG2E = 0x3e0293ee


def softmax12(base, t0):
    E(f'v_max3_f32 v{t0}, v{base}, v{base + 1}, v{base + 2}')
    for k in range(3, 11, 2):
        E(f'v_max3_f32 v{t0}, v{t0}, v{base + k}, v{base + k + 1}')
    E(f'v_max_f32 v{t0}, v{t0}, v{base + 11}')
    xlane_reduce('v_max_f32', t0, t0 + 1)
    E(f's_mov_b32 s23, {SC_LOG2E}')
    for k in range(12):
        E(f'v_sub_f32 v{base + k}, v{base + k}, v{t0}')
    for k in range(12):
        E(f'v_mul_f32 v{base + k}, s23, v{base + k}')
    for k in range(12):
        E(f'v_exp_f32 v{base + k}, v{base + k}')
    E(f'v_add_f32 v{t0}, v{base}, v{base + 1}')
    for k in range(2, 12):
        E(f'v_add_f32 v{t0}, v{t0}, v{base + k}')
    xlane_reduce('v_add_f32', t0, t0 + 1)
    E(f'v_rcp_f32 v{t0}, v{t0}')
    for k in range(12):
        E(f'v_mul_f32 v{base + k}, v{base + k}, v{t0}')


def softmax_list(R, t0):
    o = []
    o.append(f'v_max3_f32 v{t0}, v{R[0]}, v{R[1]}, v{R[2]}')
    for k in range(3, 11, 2):
        o.append(f'v_max3_f32 v{t0}, v{t0}, v{R[k]}, v{R[k + 1]}')
    o.append(f'v_max_f32 v{t0}, v{t0}, v{R[11]}')

    def xl(op):
        t = t0 + 1
        o.append(f'v_mov_b32 v{t}, v{t0}')
        o.append(f'v_permlane16_swap_b32 v{t0}, v{t}')
        o.append(f'{op} v{t0}, v{t0}, v{t}')
        o.append(f'v_mov_b32 v{t}, v{t0}')
        o.append(f'v_permlane32_swap_b32 v{t0}, v{t}')
        o.append(f'{op} v{t0}, v{t0}, v{t}')
    xl('v_max_f32')
    o.append(f's_mov_b32 s23, {SC_LOG2E}')
    o.append(f'v_mul_f32 v{t0}, s23, v{t0}')
    for k in range(12):
        o.append(f'v_fma_f32 v{R[k]}, v{R[k]}, s23, -v{t0}')
    for k in range(12):
        o.append(f'v_exp_f32 v{R[k]}, v{R[k]}')
    o.append(f'v_add_f32 v{t0}, v{R[0]}, v{R[1]}')
    for k in range(2, 12):
        o.append(f'v_add_f32 v{t0}, v{t0}, v{R[k]}')
    xl('v_add_f32')
    o.append(f'v_rcp_f32 v{t0}, v{t0}')
    for k in range(12):
        o.append(f'v_mul_f32 v{R[k]}, v{R[k]}, v{t0}')
    return o


WOF = 0
MEMT = 131072
XS = 147456
XO_REL = 12288


def gen_chain():
    a.label('Lchain')
    E(f's_load_dwordx2 s[12:13], s[0:1], {KA["wq"]}')
    E(f's_load_dwordx2 s[14:15], s[0:1], {KA["wk"]}')
    E(f's_load_dwordx2 s[16:17], s[0:1], {KA["wv"]}')
    E(f's_load_dwordx2 s[18:19], s[0:1], {KA["wo"]}')
    E(f's_load_dwordx2 s[48:49], s[0:1], {KA["mem0"]}')
    E('s_waitcnt lgkmcnt(0)')
    lane_consts()
    load_wqkv()
    stamp('s94', 1)
    STG = 131072
    STR = 1040
    E('s_lshl_b32 s23, s21, 17')
    E('s_lshl_b32 s24, s20, 12')
    E('s_add_u32 s23, s23, s24')
    E('v_add_u32 v24, s23, v7')
    E(f's_mul_i32 s24, s20, {4 * STR}')
    E('v_add_u32 v25, s24, v7')
    E(f'v_add_u32 v25, {STG}, v25')
    E('v_lshrrev_b32 v26, 2, v1')
    E('v_lshl_add_u32 v26, v2, 2, v26')
    E(f'v_mul_u32_u24 v26, {STR}, v26')
    E('v_and_b32 v27, 3, v1')
    E('v_lshl_add_u32 v26, v27, 3, v26')
    E('s_lshl_b32 s24, s20, 8')
    E('v_add_u32 v26, s24, v26')
    E(f'v_add_u32 v26, {STG}, v26')
    E('s_lshl_b32 s24, s20, 13')
    E('v_add_u32 v27, s24, v7')
    E('v_add_u32 v28, 65536, v27')
    for c in range(8):
        ks, hf = c // 2, c % 2
        E(f'v_add_u32 v29, {c * 16 * 1024}, v24')
        for i in range(4):
            E(f'global_load_dwordx4 v[{32 + 4 * i}:{35 + 4 * i}], v29, s[18:19] offset:{i * 1024}')
        for i in range(4):
            E(f's_waitcnt vmcnt({3 - i})')
            E(f'ds_write_b128 v25, v[{32 + 4 * i}:{35 + 4 * i}] offset:{i * STR}')
        barrier()
        for i in range(8):
            E(f'ds_read_b64_tr_b16 v[{48 + 2 * i}:{49 + 2 * i}], v26 offset:{i * 32}')
        for i in range(8):
            E(f's_waitcnt lgkmcnt({7 - i})')
            dreg = 27 if ks < 2 else 28
            E(f'ds_write_b64 v{dreg}, v[{48 + 2 * i}:{49 + 2 * i}] offset:{(ks % 2) * 32768 + i * 1024 + 8 * hf}')
        barrier()
    stamp('s94', 2)
    frag_bases(MEMT)
    E('v_lshrrev_b32 v24, 2, v0')
    E('v_and_b32 v25, 3, v0')
    E('v_lshrrev_b32 v26, 1, v25')
    E('v_xor_b32 v26, v26, v24')
    E('v_lshlrev_b32 v26, 4, v26')
    E('v_and_b32 v27, 1, v25')
    E('v_lshlrev_b32 v27, 3, v27')
    E('v_lshl_add_u32 v27, v24, 10, v27')
    E('s_lshl_b32 s23, s20, 8')
    E('v_add_u32 v27, s23, v27')
    E(f'v_add_u32 v27, {MEMT}, v27')
    E('v_or_b32 v8, v27, v26')
    E(f'v_add_u32 v21, {XS}, v7')
    E('s_mul_i32 s23, s20, 3072')
    E('v_add_u32 v9, s23, v21')
    E('s_lshl_b32 s23, s20, 10')
    E('v_add_u32 v20, s23, v21')
    E(f'v_add_u32 v20, {XO_REL}, v20')
    E('v_mov_b32 v10, 0xfffffffe')
    E('s_lshl_b32 s23, s20, 17')
    E('s_lshl_b32 s24, s21, 9')
    E('s_add_u32 s23, s23, s24')
    E(f's_add_u32 s23, s23, {CPART}')
    E('v_lshlrev_b32 v24, 5, v1')
    E('v_lshl_add_u32 v24, v2, 3, v24')
    E('v_add_u32 v11, s23, v24')
    E('v_lshrrev_b32 v24, 2, v1')
    E('v_and_b32 v25, 3, v1')
    E('s_lshl_b32 s23, s20, 2')
    E('v_add_u32 v26, s23, v25')
    E('v_lshlrev_b32 v26, 5, v26')
    E('v_lshl_add_u32 v26, v24, 3, v26')
    E('v_lshl_add_u32 v26, v2, 9, v26')
    E('s_lshl_b32 s24, s21, 14')
    E(f's_add_u32 s24, s24, {CPART}')
    E('v_add_u32 v12, s24, v26')
    E('v_add_u32 v26, s23, v25')
    E('v_lshl_add_u32 v27, v26, 2, v24')
    E('v_lshlrev_b32 v27, 4, v27')
    E('s_lshl_b32 s24, s21, 10')
    E(f's_add_u32 s24, s24, {CSLICE}')
    E('v_add_u32 v13, s24, v27')
    E('v_and_b32 v27, 7, v26')
    E('v_lshlrev_b32 v27, 10, v27')
    E('v_lshl_add_u32 v27, v24, 3, v27')
    E('s_lshl_b32 s24, s21, 5')
    E('v_add_u32 v27, s24, v27')
    E('global_load_dwordx2 v[28:29], v27, s[48:49]')
    E('v_cmp_le_u32 s[50:51], 8, v26')
    E('s_lshl_b32 s23, s20, 13')
    E(f's_add_u32 s23, s23, {CSLICE}')
    E('v_add_u32 v14, s23, v7')
    E('v_add_u32 v15, 4096, v14')
    E('s_lshl_b32 s23, s20, 13')
    E('v_add_u32 v22, s23, v7')
    E('v_add_u32 v23, 65536, v22')
    E('s_waitcnt vmcnt(0)')
    E('v_mov_b32 v16, v28')
    E('v_mov_b32 v17, v29')
    E('v_mov_b32 v18, 0')
    E('v_mov_b32 v19, 0')
    E('v_cmp_le_u32 s[44:45], 8, v1')
    E('v_lshrrev_b32 v24, 1, v2')
    E('v_lshrrev_b32 v25, 3, v1')
    E('v_cmp_eq_u32 s[46:47], v24, v25')
    for r in range(80, 112):
        E(f'v_mov_b32 v{r}, 0')
    E('v_lshrrev_b32 v24, 2, v0')
    E('v_and_b32 v24, 7, v24')
    E('v_lshlrev_b32 v24, 10, v24')
    E('v_and_b32 v25, 3, v0')
    E('v_lshl_add_u32 v24, v25, 3, v24')
    E('s_lshl_b32 s23, s20, 8')
    E('v_add_u32 v24, s23, v24')
    for i in range(8):
        E(f'global_load_dwordx2 v[{48 + 2 * i}:{49 + 2 * i}], v24, s[48:49] offset:{i * 32}')
    for i in range(8):
        E(f's_waitcnt vmcnt({7 - i})')
        E(f'v_xor_b32 v25, {i << 5}, v8')
        E(f'ds_write_b64 v25, v[{48 + 2 * i}:{49 + 2 * i}]')
    E('s_mov_b32 s30, 0')
    E('s_lshl_b32 s52, s21, 2')
    E('s_add_u32 s52, s52, s20')
    E('s_mul_i32 s53, s21, 24576')
    E('s_lshl_b32 s23, s20, 10')
    E('s_add_u32 s53, s53, s23')
    E(f's_add_u32 s53, s53, {QKV}')

    E('s_lshl_b32 s23, s20, 10')
    E(f's_add_u32 s54, s23, {ZBLK}')

    def blockbase(dst, segreg, l):
        E(f's_add_u32 s23, {segreg}, {l * 64}')
        E(f's_mul_i32 s23, s23, {32 * 24576}')
        E('s_add_u32 s23, s23, s53')
        E(f's_cmp_lt_u32 {segreg}, 64')
        E(f's_cselect_b32 {dst}, s23, s54')

    def flag_addr(segreg, l):
        E(f's_min_u32 s23, {segreg}, 63')
        E(f's_add_u32 s23, s23, {l * 64}')
        E('s_lshl_b32 s23, s23, 7')
        E('s_add_u32 s23, s23, s52')
        E('s_lshl_b32 s23, s23, 2')
        E('v_mov_b32 v124, s23')

    def flag_pre(segreg, l):
        flag_addr(segreg, l)
        E(f'global_load_dword v{18 + l}, v124, {WS} offset:{KV_RDY} sc1')

    def flag_sync(segreg, l):
        flag_addr(segreg, l)
        L = poll_begin()
        E(f'global_load_dword v125, v124, {WS} offset:{KV_RDY} sc1')
        E('s_waitcnt vmcnt(0)')
        E('v_cmp_ne_u32 s[40:41], 1, v125')
        poll_end(L, 1)

    def flag_chk(segreg, l):
        Lok = a.newlabel('Lfok')
        E(f's_cmp_ge_u32 {segreg}, 64')
        E(f's_cbranch_scc1 {Lok}')
        E(f'v_cmp_ne_u32 s[40:41], 1, v{18 + l}')
        E('s_cmp_eq_u64 s[40:41], 0')
        E(f's_cbranch_scc1 {Lok}')
        sv = a.nvm
        flag_sync(segreg, l)
        a.nvm = sv
        a.flush()
        a.label(Lok)

    def load_k(segreg, l):
        kb = 80 + 8 * l
        blockbase('s24', segreg, l)
        E('s_add_u32 s24, s24, 8192')
        E('v_add_u32 v124, s24, v7')
        E('v_add_u32 v125, 4096, v124')
        E(f'global_load_dwordx4 v[{kb}:{kb + 3}], v124, {WS} sc1')
        E(f'global_load_dwordx4 v[{kb + 4}:{kb + 7}], v125, {WS} sc1')

    def load_v(segreg, l):
        vb = 96 + 8 * l
        blockbase('s24', segreg, l)
        E('s_lshl_b32 s25, s20, 10')
        E('s_add_u32 s24, s24, s25')
        E('s_add_u32 s24, s24, 16384')
        E('v_add_u32 v124, s24, v7')
        E(f'global_load_dwordx4 v[{vb}:{vb + 3}], v124, {WS} sc1')
        E(f'global_load_dwordx4 v[{vb + 4}:{vb + 7}], v124, {WS} offset:1024 sc1')

    def mem_flag(treg):
        E(f's_lshl_b32 s23, {treg}, 7')
        E('s_add_u32 s23, s23, s52')
        E('s_lshl_b32 s23, s23, 2')
        E('v_mov_b32 v124, s23')
        E('v_mov_b32 v125, 1')
        E('v_add_u32 v124, %d, v124' % MEM_RDY)
        E(f'global_store_dword v124, v125, {WS} sc1')

    E('s_mov_b32 s35, 0')
    E(f's_sub_u32 s36, s35, {LAG}')
    flag_sync('s35', 0)
    load_k('s35', 0)
    load_k('s36', 1)
    E('s_mov_b32 s35, 1')
    E(f's_sub_u32 s36, s35, {LAG}')
    flag_pre('s35', 0)
    flag_pre('s36', 1)
    E('s_waitcnt vmcnt(0)')
    a.flush()
    stamp('s94', 3)
    E('s_mov_b32 s39, 95')
    a.label('Lchain_step')

    class Rec:
        def __init__(self):
            self.items = []

        def __enter__(self):
            global E
            self.old = E
            E = self.items.append
            return self.items

        def __exit__(self, *x):
            global E
            E = self.old

    def popper(stream):
        def pop(n):
            for _ in range(n):
                if not stream:
                    return
                it = stream.pop(0)
                if callable(it):
                    it()
                else:
                    E(it)
        return pop
    barrier()
    stamp('s30', 0)
    marks = {}
    with Rec() as S1:
        E(f's_sub_u32 s36, s30, {LAG}')
        load_v('s30', 0)
        load_v('s36', 1)
        S1.append(lambda: marks.__setitem__('V', a.nvm))
        mem_flag('s39')
        E('s_lshl_b32 s23, s30, 5')
        E('s_add_u32 s23, s23, s21')
        E('s_lshl_b32 s23, s23, 13')
        E('s_lshl_b32 s24, s20, 10')
        E('s_add_u32 s23, s23, s24')
        E(f's_add_u32 s33, s23, {MEMKV}')
        E('s_add_u32 s31, s30, 1')
        E('s_and_b32 s31, s31, 1')
    pop = popper(S1)

    def rd(ks):
        E(f'ds_read_b128 v[{48 + 4 * (ks % 8)}:{51 + 4 * (ks % 8)}], v{3 + ks % 4} offset:{(ks // 4) * 256}')
    for ks in range(8):
        rd(ks)
    for ks in range(16):
        E(f's_waitcnt lgkmcnt({min(7, 15 - ks)})')
        mf = f'v[{48 + 4 * (ks % 8)}:{51 + 4 * (ks % 8)}]'
        for m in range(2):
            for T in range(2):
                acc = f'v[{24 + 8 * m + 4 * T}:{27 + 8 * m + 4 * T}]'
                E(f'v_mfma_f32_16x16x32_bf16 {acc}, {wfrag(m, T, ks)}, {mf}, {acc if ks else 0}')
                pop(1)
        if ks + 8 < 16:
            rd(ks + 8)
    pop(1000)
    stamp('s30', 1)
    E('v_add_u32 v124, s33, v7')
    for T in range(2):
        for j in range(2):
            E(f'v_cvt_pk_bf16_f32 v{112 + 2 * T + j}, v{24 + 4 * T + 2 * j}, v{25 + 4 * T + 2 * j}')
            E(f'v_cvt_pk_bf16_f32 v{116 + 2 * T + j}, v{32 + 4 * T + 2 * j}, v{33 + 4 * T + 2 * j}')
    for c in range(2):
        for kt in range(2):
            kb = 80 + 8 * c + 4 * kt
            d = 48 + 8 * c + 4 * kt
            E(f'v_mfma_f32_16x16x32_bf16 v[{d}:{d + 3}], v[{kb}:{kb + 3}], v[112:115], 0')
    E('v_mfma_f32_16x16x32_bf16 v[76:79], v[116:119], v[112:115], 0')
    E(f'global_store_dwordx4 v124, v[116:119], {WS} sc1')
    E('s_add_u32 s35, s30, 1')
    E(f's_sub_u32 s36, s35, {LAG}')
    for k in range(8):
        E(f'v_cndmask_b32 v{68 + k}, v{48 + k}, v{56 + k}, s[44:45]')
    for b in range(3):
        E(f'ds_write_b128 v9, v[{68 + 4 * b}:{71 + 4 * b}] offset:{b * 1024}')
    barrier()
    stamp('s30', 2)
    SR = list(range(112, 120)) + list(range(76, 80))
    seqs = {}

    def xs_reads(half):
        def f():
            for ww in range(2):
                for b in range(3):
                    r = (24 if ww == 0 else 64) + 4 * b
                    E(f'ds_read_b128 v[{r}:{r + 3}], v21 offset:{(2 * half + ww) * 3072 + b * 1024}')
            seqs[half] = a.nds
        return f
    xs_reads(0)()
    fseq = {}

    def rd2(ks):
        E(f'ds_read_b128 v[{48 + 4 * (ks % 4)}:{51 + 4 * (ks % 4)}], v{3 + ks % 4} offset:{(ks // 4) * 256}')
        fseq[ks] = a.nds
    for ks in range(4):
        rd2(ks)
    flag_chk('s35', 0)
    flag_chk('s36', 1)
    with Rec() as S2:
        load_k('s35', 0)
        S2.append(lambda: a.wait_ds(seqs[0]))
        for k in range(0, 12, 2):
            E(f'v_pk_add_f32 v[{SR[k]}:{SR[k] + 1}], v[{24 + k}:{25 + k}], v[{64 + k}:{65 + k}]')
        S2.append(xs_reads(1))
        load_k('s36', 1)
        E('s_add_u32 s35, s30, 2')
        E(f's_sub_u32 s36, s35, {LAG}')
        flag_pre('s35', 0)
        flag_pre('s36', 1)
        E('v_mov_b32 v124, 0xf149f2ca')
        S2.append(lambda: a.wait_ds(seqs[1]))
        for k in range(0, 12, 2):
            E(f'v_pk_add_f32 v[{24 + k}:{25 + k}], v[{24 + k}:{25 + k}], v[{64 + k}:{65 + k}]')
        for k in range(0, 12, 2):
            E(f'v_pk_add_f32 v[{SR[k]}:{SR[k] + 1}], v[{SR[k]}:{SR[k] + 1}], v[{24 + k}:{25 + k}]')
        for k in range(4):
            E(f'v_cndmask_b32 v{SR[8 + k]}, v124, v{SR[8 + k]}, s[46:47]')
        for it in softmax_list(SR, 124):
            E(it)
        for j in range(4):
            E(f'v_cvt_pk_bf16_f32 v{24 + j}, v{SR[2 * j]}, v{SR[2 * j + 1]}')
        for j in range(2):
            E(f'v_cvt_pk_bf16_f32 v{36 + j}, v{SR[8 + 2 * j]}, v{SR[9 + 2 * j]}')
        for j in range(4):
            E(f'v_cndmask_b32 v{28 + j}, v{24 + j}, 0, s[44:45]')
            E(f'v_cndmask_b32 v{32 + j}, 0, v{24 + j}, s[44:45]')
    pop = popper(S2)
    per = (len(S2) + 31) // 32
    for ks in range(16):
        a.wait_ds(fseq[ks])
        mf = f'v[{48 + 4 * (ks % 4)}:{51 + 4 * (ks % 4)}]'
        for T in range(2):
            acc = f'v[{40 + 4 * T}:{43 + 4 * T}]'
            E(f'v_mfma_f32_16x16x32_bf16 {acc}, {mf}, {wfrag(2, T, ks)}, {acc if ks else 0}')
            pop(per)
        if ks + 4 < 16:
            rd2(ks + 4)
    pop(1000)
    SETS = (48, 24, 64)

    def rdwo(i):
        st = SETS[i % 3]
        for ks in range(4):
            E(f'ds_read_b128 v[{st + 4 * ks}:{st + 3 + 4 * ks}], v{22 + ks // 2} offset:{(ks % 2) * 32768 + i * 1024}')
        seqs['wo', i] = a.nds
    rdwo(0)
    for T in range(2):
        for j in range(2):
            E(f'v_cvt_pk_bf16_f32 v{120 + 2 * T + j}, v{40 + 4 * T + 2 * j}, v{41 + 4 * T + 2 * j}')
    E('v_add_u32 v124, s33, v7')
    E('v_add_u32 v124, 4096, v124')
    a.wait_vm(marks['V'])
    for et in range(2):
        o = f'v[{64 + 4 * et}:{67 + 4 * et}]'
        E(f'v_mfma_f32_16x16x32_bf16 {o}, v[{96 + 4 * et}:{99 + 4 * et}], v[28:31], 0')
    for et in range(2):
        o = f'v[{64 + 4 * et}:{67 + 4 * et}]'
        E(f'v_mfma_f32_16x16x32_bf16 {o}, v[{104 + 4 * et}:{107 + 4 * et}], v[32:35], {o}')
    for et in range(2):
        o = f'v[{40 + 4 * et}:{43 + 4 * et}]'
        E(f'v_mfma_f32_16x16x16_bf16 {o}, v[{120 + 2 * et}:{121 + 2 * et}], v[36:37], 0')
    E(f'global_store_dwordx4 v124, v[120:123], {WS} sc1')
    for k in range(0, 8, 2):
        E(f'v_pk_add_f32 v[{64 + k}:{65 + k}], v[{64 + k}:{65 + k}], v[{40 + k}:{41 + k}]')
    for et in range(2):
        for j in range(2):
            E(f'v_cvt_pk_bf16_f32 v{72 + 2 * et + j}, v{64 + 4 * et + 2 * j}, v{65 + 4 * et + 2 * j}')
    E('ds_write_b128 v20, v[72:75]')
    barrier()
    stamp('s30', 3)
    for ks in range(4):
        E(f'ds_read_b128 v[{96 + 4 * ks}:{99 + 4 * ks}], v21 offset:{XO_REL + ks * 1024}')
    rdwo(1)
    stamp('s30', 4)

    def op_store(i):
        acc = 40 + 4 * (i % 2)
        pk = 124 + 2 * (i % 2)
        for j in range(2):
            E(f'v_cvt_pk_bf16_f32 v{pk + j}, v{acc + 2 * j}, v{acc + 2 * j + 1}')
        for j in range(2):
            E(f'v_and_or_b32 v{pk + j}, v{pk + j}, v10, s31')
        E(f'v_add_u32 v{acc}, {i * 16384}, v11')
        E(f'global_store_dwordx2 v{acc}, v[{pk}:{pk + 1}], {WS}')
    for i in range(8):
        if i + 2 < 8:
            rdwo(i + 2)
        a.wait_ds(seqs['wo', max(i, 1)] if i < 1 else seqs['wo', i])
        st = SETS[i % 3]
        acc = 40 + 4 * (i % 2)
        for ks in range(4):
            E(f'v_mfma_f32_16x16x32_bf16 v[{acc}:{acc + 3}], v[{st + 4 * ks}:{st + 3 + 4 * ks}], v[{96 + 4 * ks}:{99 + 4 * ks}], {f"v[{acc}:{acc + 3}]" if ks else 0}')
        if i > 0:
            op_store(i - 1)
    op_store(7)
    stamp('s30', 5)
    L = poll_begin()
    E('v_add_u32 v124, 4096, v12')
    E('v_add_u32 v125, 8192, v12')
    E('v_add_u32 v126, 12288, v12')
    for i in range(8):
        ar = ('v12', 'v124', 'v125', 'v126')[i // 2]
        E(f'global_load_dwordx2 v[{48 + 2 * i}:{49 + 2 * i}], {ar}, {WS} offset:{(i % 2) * 2048} sc1')
    E('s_waitcnt vmcnt(0)')
    E('v_and_b32 v124, v48, v50')
    E('v_or3_b32 v125, v48, v50, v52')
    for k in (52, 54, 56, 58, 60, 62):
        E(f'v_and_b32 v124, v124, v{k}')
    E('v_or3_b32 v125, v125, v54, v56')
    E('v_or3_b32 v125, v125, v58, v60')
    E('v_or_b32 v125, v125, v62')
    E('v_and_b32 v124, 1, v124')
    E('v_and_b32 v125, 1, v125')
    E('v_cmp_ne_u32 s[40:41], s31, v124')
    E('v_cmp_ne_u32 s[42:43], s31, v125')
    E('s_or_b64 s[40:41], s[40:41], s[42:43]')
    poll_end(L, 2)
    stamp('s30', 6)
    stampval('s30', 10, 's90')
    for i in range(8):
        for j in range(2):
            r = 48 + 2 * i + j
            if i == 0:
                E(f'v_lshlrev_b32 v{24 + 2 * j}, 16, v{r}')
                E(f'v_and_b32 v{25 + 2 * j}, 0xffff0000, v{r}')
            else:
                t = 28 + 2 * j
                E(f'v_lshlrev_b32 v{t}, 16, v{r}')
                E(f'v_and_b32 v{t + 1}, 0xffff0000, v{r}')
                E(f'v_pk_add_f32 v[{24 + 2 * j}:{25 + 2 * j}], v[{24 + 2 * j}:{25 + 2 * j}], v[{t}:{t + 1}]')
    for j in range(4):
        xlane_reduce('v_add_f32', 24 + j, 28 + j)
    E('s_add_u32 s32, s30, 1')
    for j in range(4):
        E(f'v_cvt_pk_bf16_f32 v{24 + j}, v{24 + j}, v{24 + j}')
        E(f'v_and_b32 v{24 + j}, 0xffff0000, v{24 + j}')
    Lo = a.newlabel('Lov')
    E(f's_cmp_gt_u32 s32, {LAG}')
    E(f's_cbranch_scc1 {Lo}')
    for j in range(2):
        E(f'v_lshlrev_b32 v124, 16, v{16 + j}')
        E(f'v_and_b32 v125, 0xffff0000, v{16 + j}')
        E(f'v_cndmask_b32 v{24 + 2 * j}, v{24 + 2 * j}, v124, s[50:51]')
        E(f'v_cndmask_b32 v{25 + 2 * j}, v{25 + 2 * j}, v125, s[50:51]')
    a.flush()
    a.label(Lo)
    for j in range(4):
        E(f'v_or_b32 v{24 + j}, s32, v{24 + j}')
    E('s_mov_b64 exec, 0xffff')
    E(f'global_store_dwordx4 v13, v[24:27], {WS}')
    E('s_mov_b64 exec, -1')
    E(f's_cmp_ge_u32 s32, {NSTEP}')
    E('s_cbranch_scc1 Lchain_done')
    stamp('s30', 7)
    L = poll_begin()
    for i in range(8):
        E(f'global_load_dwordx4 v[{48 + 4 * i}:{51 + 4 * i}], v{14 + i // 4}, {WS} offset:{(i % 4) * 1024} sc1')
    E('s_waitcnt vmcnt(0)')
    E('v_and_b32 v124, v48, v52')
    E('v_or3_b32 v125, v48, v52, v56')
    for k in (56, 60, 64, 68, 72, 76):
        E(f'v_and_b32 v124, v124, v{k}')
    E('v_or3_b32 v125, v125, v60, v64')
    E('v_or3_b32 v125, v125, v68, v72')
    E('v_or_b32 v125, v125, v76')
    E('v_and_b32 v124, 0xffff, v124')
    E('v_and_b32 v125, 0xffff, v125')
    E('v_cmp_ne_u32 s[40:41], s32, v124')
    E('v_cmp_ne_u32 s[42:43], s32, v125')
    E('s_or_b64 s[40:41], s[40:41], s[42:43]')
    poll_end(L, 3)
    stamp('s30', 8)
    stampval('s30', 11, 's90')
    E('s_mov_b32 s23, 0x07060302')
    for i in range(8):
        E(f'v_perm_b32 v{24 + 2 * i}, v{49 + 4 * i}, v{48 + 4 * i}, s23')
        E(f'v_perm_b32 v{25 + 2 * i}, v{51 + 4 * i}, v{50 + 4 * i}, s23')
        E(f'v_xor_b32 v124, {i << 5}, v8')
        E(f'ds_write_b64 v124, v[{24 + 2 * i}:{25 + 2 * i}]')
    E('s_mov_b32 s39, s30')
    E('s_mov_b32 s30, s32')
    a.flush()
    E('s_branch Lchain_step')
    a.label('Lchain_done')
    mem_flag('s30')
    E('s_waitcnt vmcnt(0)')
    E('s_endpgm')


def make_tables(nteams, k1, k2):
    items = []
    for p in range(32):
        items.append((2 * p + k1, 0, p))
        items.append((2 * p + LAG + k2, 1, p))
    items.sort()
    tabs = [[] for _ in range(nteams)]
    for i, (k, l, p) in enumerate(items):
        tabs[i % nteams].append(l * 32 + p)
    return tabs


def table_ptr(label, first_xcc):
    E('s_getpc_b64 s[54:55]')
    a.label('Lpc' + label)
    E(f's_add_u32 s54, s54, {label} - Lpc{label}')
    E('s_addc_u32 s55, s55, 0')
    E(f's_sub_u32 s23, s22, {first_xcc}')
    E(f's_mul_i32 s23, s23, {4 * 64}')
    E('s_add_u32 s54, s54, s23')
    E('s_addc_u32 s55, s55, 0')


def gen_A():
    tabs = make_tables(2, -8, -4)
    a.label('LroleA')
    E(f's_load_dwordx2 s[12:13], s[0:1], {KA["wq"]}')
    E(f's_load_dwordx2 s[14:15], s[0:1], {KA["wk"]}')
    E(f's_load_dwordx2 s[16:17], s[0:1], {KA["wv"]}')
    E('s_waitcnt lgkmcnt(0)')
    lane_consts()
    load_wqkv()
    stamp('s94', 1)
    XN = 0
    frag_bases(XN)
    table_ptr('Ltab_A', 1)
    E('s_mov_b32 s30, 0')
    E('s_mul_i32 s53, s21, 24576')
    E('s_lshl_b32 s23, s20, 10')
    E('s_add_u32 s53, s53, s23')
    E(f's_add_u32 s53, s53, {QKV}')
    E('s_lshl_b32 s52, s21, 2')
    E('s_add_u32 s52, s52, s20')
    a.flush()
    a.label('LA_item')
    E('s_lshl_b32 s23, s30, 2')
    E('s_load_dword s31, s[54:55], s23')
    E('s_waitcnt lgkmcnt(0)')
    E('s_cmp_ge_u32 s31, 64')
    E('s_cbranch_scc1 LA_done')
    stamp('s30', 0)
    E('s_and_b32 s32, s31, 31')
    E('s_lshl_b32 s33, s32, 16')
    E('s_lshl_b32 s31, s31, 1')
    E('s_cmp_ge_u32 s31, 64')
    E('s_cbranch_scc1 LA_l2')
    layernorm64(XIN, 's33', XN)
    a.flush()
    E('s_branch LA_ln_done')
    a.label('LA_l2')
    E('s_lshl_b32 s23, s32, 9')
    E(f's_add_u32 s23, s23, {X2_RDY}')
    E('v_lshlrev_b32 v124, 3, v0')
    E('v_add_u32 v124, s23, v124')
    L = poll_begin()
    E(f'global_load_dwordx2 v[24:25], v124, {WS} sc1')
    E('s_waitcnt vmcnt(0)')
    E('v_and_b32 v24, v24, v25')
    E('v_cmp_ne_u32 s[40:41], 1, v24')
    poll_end(L, 4)
    E(f's_add_u32 s33, s33, {X2}')
    layernorm64(WS, 's33', XN)
    a.flush()
    a.label('LA_ln_done')
    barrier()
    stamp('s30', 1)

    def kvflag(sg):
        E(f's_add_u32 s23, s31, {sg}')
        E('s_lshl_b32 s23, s23, 7')
        E('s_add_u32 s23, s23, s52')
        E('s_lshl_b32 s23, s23, 2')
        E('v_mov_b32 v124, s23')
        E('v_mov_b32 v125, 1')
        E(f'global_store_dword v124, v125, {WS} offset:{KV_RDY} sc1')
    seq0 = None
    for sg in range(2):
        def rd(ks):
            for rt in range(2):
                r = 72 + 8 * (ks % 4) + 4 * rt
                E(f'ds_read_b128 v[{r}:{r + 3}], v{3 + ks % 4} offset:{sg * 32768 + rt * 16384 + (ks // 4) * 256}')
        for ks in range(4):
            rd(ks)
        for ks in range(16):
            E(f's_waitcnt lgkmcnt({min(6, 2 * (15 - ks))})')
            for rt in range(2):
                r = 72 + 8 * (ks % 4) + 4 * rt
                mf = f'v[{r}:{r + 3}]'
                for m in range(2):
                    for T in range(2):
                        ar = 24 + 16 * m + 8 * rt + 4 * T
                        acc = f'v[{ar}:{ar + 3}]'
                        E(f'v_mfma_f32_16x16x32_bf16 {acc}, {wfrag(m, T, ks)}, {mf}, {acc if ks else 0}')
                for T in range(2):
                    ar = 56 + 8 * rt + 4 * T
                    acc = f'v[{ar}:{ar + 3}]'
                    E(f'v_mfma_f32_16x16x32_bf16 {acc}, {mf}, {wfrag(2, T, ks)}, {acc if ks else 0}')
            if ks + 4 < 16:
                rd(ks + 4)
            if sg == 1 and ks == 7:
                a.wait_vm(seq0)
                kvflag(0)
        E(f's_add_u32 s23, s31, {sg}')
        E(f's_mul_i32 s23, s23, {32 * 24576}')
        E('s_add_u32 s23, s23, s53')
        E('v_add_u32 v22, s23, v7')
        for m in range(2):
            for rt in range(2):
                d = 104 + 8 * m + 4 * rt
                for T in range(2):
                    for j in range(2):
                        ar = 24 + 16 * m + 8 * rt + 4 * T + 2 * j
                        E(f'v_cvt_pk_bf16_f32 v{d + 2 * T + j}, v{ar}, v{ar + 1}')
                E(f'v_add_u32 v23, {m * 8192 + rt * 4096}, v22')
                E(f'global_store_dwordx4 v23, v[{d}:{d + 3}], {WS} sc1')
        E('s_lshl_b32 s24, s20, 10')
        E('v_add_u32 v22, s24, v22')
        E('v_add_u32 v22, 16384, v22')
        for T in range(2):
            d = 16 + 4 * T if False else 120 - 0
            d = (120, 8)[T]
            for rt in range(2):
                for j in range(2):
                    ar = 56 + 8 * rt + 4 * T + 2 * j
                    E(f'v_cvt_pk_bf16_f32 v{d + 2 * rt + j}, v{ar}, v{ar + 1}')
            E(f'global_store_dwordx4 v22, v[{d}:{d + 3}], {WS} offset:{T * 1024} sc1')
        seq0 = a.nvm
    stamp('s30', 2)
    E('s_waitcnt vmcnt(0)')
    kvflag(1)
    stamp('s30', 3)
    E('s_add_u32 s30, s30, 1')
    E('s_barrier')
    a.flush()
    E('s_branch LA_item')
    a.label('LA_done')
    E('s_waitcnt vmcnt(0)')
    E('s_endpgm')
    return tabs


def team_consts():
    E('s_lshl_b32 s23, s56, 21')
    E(f's_add_u32 s23, s23, {BPART}')
    E('s_lshl_b32 s24, s20, 19')
    E('s_add_u32 s24, s24, s23')
    E('s_lshl_b32 s25, s21, 11')
    E('s_add_u32 s24, s24, s25')
    E('v_add_u32 v11, s24, v7')
    E('s_lshl_b32 s24, s21, 16')
    E('s_add_u32 s24, s24, s23')
    E('s_lshr_b32 s25, s20, 1')
    E('s_lshl_b32 s25, s25, 10')
    E('s_add_u32 s24, s24, s25')
    E('s_and_b32 s25, s20, 1')
    E('s_lshl_b32 s25, s25, 9')
    E('s_add_u32 s24, s24, s25')
    E('v_lshrrev_b32 v24, 5, v0')
    E('v_and_b32 v25, 31, v0')
    E('v_lshlrev_b32 v25, 4, v25')
    E('v_lshl_add_u32 v25, v24, 11, v25')
    E('v_add_u32 v12, s24, v25')
    E('s_lshr_b32 s25, s20, 1')
    E('s_lshl_b32 s25, s25, 5')
    E('v_lshl_add_u32 v26, v24, 4, v1')
    E('v_add_u32 v26, s25, v26')
    E('v_lshlrev_b32 v26, 10, v26')
    E('v_and_b32 v27, 1, v2')
    E('s_and_b32 s25, s20, 1')
    E('s_lshl_b32 s25, s25, 4')
    E('s_lshl_b32 s24, s21, 5')
    E('s_add_u32 s25, s25, s24')
    E('v_lshl_add_u32 v26, v27, 3, v26')
    E('v_add_u32 v13, s25, v26')
    E('v_cmp_eq_u32 s[58:59], 1, v24')
    E('s_lshl_b32 s23, s56, 7')
    E(f's_add_u32 s57, s23, {PF}')
    E('s_lshl_b32 s23, s56, 9')
    E(f's_add_u32 s60, s23, {DONE}')


def done_pre():
    E('v_lshlrev_b32 v124, 3, v0')
    E('v_add_u32 v124, s60, v124')
    E(f'global_load_dwordx2 v[16:17], v124, {WS} sc1')


def wait_done(code):
    Lok = a.newlabel('Ldok')
    E('s_sub_u32 s23, s34, 1')
    E('v_min_u32 v16, v16, v17')
    E('v_cmp_gt_u32 s[40:41], s23, v16')
    E('s_cmp_eq_u64 s[40:41], 0')
    E(f's_cbranch_scc1 {Lok}')
    E('v_lshlrev_b32 v124, 3, v0')
    E('v_add_u32 v124, s60, v124')
    L = poll_begin()
    E(f'global_load_dwordx2 v[126:127], v124, {WS} sc1')
    E('s_waitcnt vmcnt(0)')
    E('v_min_u32 v126, v126, v127')
    E('v_cmp_gt_u32 s[40:41], s23, v126')
    poll_end(L, code)
    a.flush()
    a.label(Lok)


def publish_and_reduce(nprod, code, producer_mask_label=None):
    E('s_waitcnt vmcnt(0)')
    E('s_barrier')
    E('s_lshl_b32 s23, s21, 2')
    E('s_add_u32 s23, s23, s57')
    E('v_mov_b32 v124, s23')
    E('v_mov_b32 v125, s34')
    E(f'global_store_dword v124, v125, {WS}')
    if producer_mask_label:
        a.flush()
        a.label(producer_mask_label)
    E('v_and_b32 v124, 31, v0')
    E(f'v_min_u32 v124, {nprod - 1}, v124')
    E('v_lshlrev_b32 v124, 2, v124')
    E('v_add_u32 v124, s57, v124')
    L = poll_begin()
    E(f'global_load_dword v125, v124, {WS} sc1')
    E('s_waitcnt vmcnt(0)')
    E('v_cmp_gt_u32 s[40:41], s34, v125')
    poll_end(L, code)
    nl = nprod // 2
    sq = []
    for i in range(nl):
        E(f'v_add_u32 v124, {i * 4096}, v12')
        E(f'global_load_dwordx4 v[{40 + 4 * i}:{43 + 4 * i}], v124, {WS} sc1')
        sq.append(a.nvm)
    for i in range(nl):
        a.wait_vm(sq[i])
        for j in range(4):
            r = 40 + 4 * i + j
            if i == 0:
                E(f'v_lshlrev_b32 v{24 + 2 * j}, 16, v{r}')
                E(f'v_and_b32 v{25 + 2 * j}, 0xffff0000, v{r}')
            else:
                E(f'v_lshlrev_b32 v124, 16, v{r}')
                E(f'v_and_b32 v125, 0xffff0000, v{r}')
                E(f'v_pk_add_f32 v[{24 + 2 * j}:{25 + 2 * j}], v[{24 + 2 * j}:{25 + 2 * j}], v[124:125]')
    E('s_lshl_b32 s23, s52, 2')
    E('s_add_u32 s23, s23, s60')
    E('v_mov_b32 v124, s23')
    E('v_mov_b32 v125, s34')
    E(f'global_store_dword v124, v125, {WS}')
    for k in range(8):
        E(f'v_mov_b32 v{32 + k}, v{24 + k}')
        E(f'v_permlane32_swap_b32 v{24 + k}, v{32 + k}')
        E(f'v_add_f32 v{24 + k}, v{24 + k}, v{32 + k}')
    for k in range(4):
        E(f'v_cndmask_b32 v{24 + k}, v{24 + k}, v{28 + k}, s[58:59]')


def partial_store(i, accs):
    for rtp in range(2):
        for h2 in range(2):
            ar = accs[2 * rtp + h2]
            for j in range(2):
                E(f'v_cvt_pk_bf16_f32 v{104 + 4 * rtp + 2 * h2 + j}, v{ar + 2 * j}, v{ar + 2 * j + 1}')
    E(f'v_add_u32 v124, {i * 65536}, v11')
    E(f'global_store_dwordx4 v124, v[104:107], {WS}')
    E(f'global_store_dwordx4 v124, v[108:111], {WS} offset:1024')


def gen_B():
    a.label('LroleB')
    E(f's_load_dwordx2 s[18:19], s[0:1], {KA["wo"]}')
    E('s_waitcnt lgkmcnt(0)')
    lane_consts()
    STR = 1040
    E('s_lshl_b32 s23, s21, 17')
    E('s_lshl_b32 s24, s20, 15')
    E('s_add_u32 s23, s23, s24')
    E('v_add_u32 v24, s23, v7')
    E(f's_mul_i32 s24, s20, {32 * STR}')
    E('v_add_u32 v25, s24, v7')
    for b in range(4):
        E(f'v_add_u32 v26, {b * 8192}, v24')
        E(f'v_add_u32 v27, {b * 8192 + 4096}, v24')
        for i in range(8):
            E(f'global_load_dwordx4 v[{32 + 4 * i}:{35 + 4 * i}], v{26 + i // 4}, s[18:19] offset:{(i % 4) * 1024}')
        for i in range(8):
            E(f's_waitcnt vmcnt({7 - i})')
            E(f'ds_write_b128 v25, v[{32 + 4 * i}:{35 + 4 * i}] offset:{(b * 8 + i) * STR}')
    barrier()
    E('v_lshrrev_b32 v26, 2, v1')
    E('v_lshl_add_u32 v26, v2, 2, v26')
    E(f'v_mul_u32_u24 v26, {STR}, v26')
    E('v_and_b32 v27, 3, v1')
    E('v_lshl_add_u32 v26, v27, 3, v26')
    E('s_lshl_b32 s24, s20, 8')
    E('v_add_u32 v26, s24, v26')
    E(f'v_add_u32 v27, {64 * STR}, v26')
    for ni in range(8):
        for ks in range(4):
            r = 128 + (ni * 4 + ks) * 4
            off = (ks % 2) * 32 * STR + ni * 32
            E(f'ds_read_b64_tr_b16 v[{r}:{r + 1}], v{26 + ks // 2} offset:{off}')
            E(f'ds_read_b64_tr_b16 v[{r + 2}:{r + 3}], v{26 + ks // 2} offset:{off + 16 * STR}')
    barrier()
    E('s_sub_u32 s61, s22, 3')
    E('s_mov_b32 s56, s61')
    E('s_lshl_b32 s52, s21, 2')
    E('s_add_u32 s52, s52, s20')
    team_consts()
    E('s_and_b32 s23, s20, 1')
    E('s_lshl_b32 s23, s23, 4')
    E('v_add_u32 v14, s23, v1')
    E('v_lshlrev_b32 v24, 2, v2')
    E('v_sub_u32 v14, v14, v24')
    E('v_lshrrev_b32 v24, 1, v2')
    E('v_cmp_eq_u32 s[46:47], s61, v24')
    E('s_lshl_b32 s23, s20, 12')
    E('v_add_u32 v20, s23, v7')
    E('s_mov_b32 s34, 1')
    a.flush()
    a.label('LB_item')
    stamp('s34', 0)
    E('s_sub_u32 s35, s34, 1')
    E('s_lshl_b32 s36, s35, 1')
    E('s_lshr_b32 s23, s20, 1')
    E('s_add_u32 s36, s36, s23')
    E(f's_mul_i32 s37, s61, {LAG}')
    E('s_add_u32 s37, s37, s36')
    E('s_lshl_b32 s38, s61, 6')
    E('s_add_u32 s38, s38, s36')
    E('s_lshl_b32 s23, s38, 9')
    E('s_lshl_b32 s24, s21, 4')
    E('s_add_u32 s23, s23, s24')
    E('s_lshl_b32 s25, s37, 9')
    E('s_add_u32 s25, s25, s24')
    E(f's_add_u32 s25, s25, {MEM_RDY}')
    E('v_mov_b32 v124, s23')
    E('v_mov_b32 v125, s25')
    L = poll_begin()
    E(f'global_load_dwordx4 v[24:27], v124, {WS} offset:{KV_RDY} sc1')
    E(f'global_load_dwordx4 v[28:31], v125, {WS} sc1')
    E('s_waitcnt vmcnt(0)')
    E('v_and_b32 v24, v24, v25')
    E('v_and_b32 v26, v26, v27')
    E('v_and_b32 v28, v28, v29')
    E('v_and_b32 v30, v30, v31')
    E('v_and_b32 v24, v24, v26')
    E('v_and_b32 v28, v28, v30')
    E('v_and_b32 v24, v24, v28')
    E('v_cmp_ne_u32 s[40:41], 1, v24')
    poll_end(L, 5)
    stamp('s34', 1)
    done_pre()
    E('s_lshl_b32 s23, s35, 16')
    E('v_add_u32 v124, s23, v13')
    Lr = a.newlabel('Lres')
    Lr2 = a.newlabel('Lres')
    E('s_cmp_eq_u32 s61, 0')
    E(f's_cbranch_scc0 {Lr}')
    E(f'global_load_dwordx2 v[22:23], v124, {XIN} sc1')
    E(f's_branch {Lr2}')
    a.label(Lr)
    E(f'v_add_u32 v125, {X2}, v124')
    E(f'global_load_dwordx2 v[22:23], v125, {WS} sc1')
    a.label(Lr2)
    E(f's_mul_i32 s23, s38, {32 * 24576}')
    E('s_mul_i32 s24, s21, 24576')
    E('s_add_u32 s23, s23, s24')
    E(f's_add_u32 s23, s23, {QKV}')
    E('v_add_u32 v124, s23, v7')
    E('s_and_b32 s24, s20, 1')
    E('s_lshl_b32 s24, s24, 12')
    E('v_add_u32 v125, s24, v124')
    for ks in range(4):
        E(f'global_load_dwordx4 v[{24 + 4 * ks}:{27 + 4 * ks}], v125, {WS} offset:{ks * 1024} sc1')
    for kt in range(2):
        E(f'v_add_u32 v125, {8192 + kt * 4096}, v124')
        for ks in range(4):
            r = 40 + 16 * kt + 4 * ks
            E(f'global_load_dwordx4 v[{r}:{r + 3}], v125, {WS} offset:{ks * 1024} sc1')
    E('s_lshl_b32 s23, s37, 5')
    E('s_add_u32 s23, s23, s21')
    E('s_lshl_b32 s23, s23, 13')
    E(f's_add_u32 s23, s23, {MEMKV}')
    E('v_add_u32 v126, s23, v7')
    for ks in range(4):
        E(f'global_load_dwordx4 v[{72 + 4 * ks}:{75 + 4 * ks}], v126, {WS} offset:{ks * 1024} sc1')
    for hb in range(2):
        E(f'v_add_u32 v125, {16384 + hb * 4096}, v124')
        for e in range(4):
            r = 16 * hb + 4 * e
            E(f'global_load_dwordx4 a[{r}:{r + 3}], v125, {WS} offset:{e * 1024} sc1')
    E('v_add_u32 v126, 4096, v126')
    for ks in range(4):
        E(f'global_load_dwordx4 a[{32 + 4 * ks}:{35 + 4 * ks}], v126, {WS} offset:{ks * 1024} sc1')
    E('s_waitcnt vmcnt(12)')
    for ks in range(4):
        q = f'v[{24 + 4 * ks}:{27 + 4 * ks}]'
        for kt in range(2):
            r = 40 + 16 * kt + 4 * ks
            d = 88 + 4 * kt
            E(f'v_mfma_f32_16x16x32_bf16 v[{d}:{d + 3}], v[{r}:{r + 3}], {q}, {f"v[{d}:{d + 3}]" if ks else 0}')
        E(f'v_mfma_f32_16x16x32_bf16 v[96:99], v[{72 + 4 * ks}:{75 + 4 * ks}], {q}, {"v[96:99]" if ks else 0}')
    E('v_mov_b32 v124, 0xf149f2ca')
    for kt in range(2):
        for r in range(4):
            E(f'v_cmp_le_i32 vcc, {16 * kt + r}, v14')
            E(f'v_cndmask_b32 v{88 + 4 * kt + r}, v124, v{88 + 4 * kt + r}, vcc')
    for k in range(4):
        E(f'v_cndmask_b32 v{96 + k}, v124, v{96 + k}, s[46:47]')
    softmax12(88, 124)
    for j in range(4):
        E(f'v_cvt_pk_bf16_f32 v{100 + j}, v{88 + 2 * j}, v{89 + 2 * j}')
    for j in range(2):
        E(f'v_cvt_pk_bf16_f32 v{104 + j}, v{96 + 2 * j}, v{97 + 2 * j}')
    E('s_waitcnt vmcnt(0)')
    for et in range(8):
        o = f'v[{24 + 4 * et}:{27 + 4 * et}]'
        E(f'v_mfma_f32_16x16x32_bf16 {o}, a[{4 * et}:{4 * et + 3}], v[100:103], 0')
    for et in range(8):
        o = f'v[{24 + 4 * et}:{27 + 4 * et}]'
        mr = 32 + 4 * (et // 2) + 2 * (et % 2)
        E(f'v_mfma_f32_16x16x16_bf16 {o}, a[{mr}:{mr + 1}], v[104:105], {o}')
    for ks in range(4):
        for T in range(2):
            for j in range(2):
                ar = 24 + 4 * (2 * ks + T) + 2 * j
                E(f'v_cvt_pk_bf16_f32 v{56 + 4 * ks + 2 * T + j}, v{ar}, v{ar + 1}')
        E(f'ds_write_b128 v20, v[{56 + 4 * ks}:{59 + 4 * ks}] offset:{ks * 1024}')
    barrier()
    for rt in range(4):
        for ks in range(4):
            r = 24 + 16 * rt + 4 * ks
            E(f'ds_read_b128 v[{r}:{r + 3}], v7 offset:{rt * 4096 + ks * 1024}')
    stamp('s34', 2)
    wait_done(6)
    stamp('s34', 3)
    E('s_waitcnt lgkmcnt(0)')
    for i in range(8):
        accs = [88 + 4 * rt for rt in range(4)]
        for ks in range(4):
            wr = 128 + (i * 4 + ks) * 4
            for rt in range(4):
                r = 24 + 16 * rt + 4 * ks
                ac = f'v[{accs[rt]}:{accs[rt] + 3}]'
                E(f'v_mfma_f32_16x16x32_bf16 {ac}, v[{wr}:{wr + 3}], v[{r}:{r + 3}], {ac if ks else 0}')
        partial_store(i, accs)
    stamp('s34', 4)
    publish_and_reduce(32, 7)
    stamp('s34', 5)
    E('s_lshl_b32 s23, s35, 16')
    E('v_add_u32 v124, s23, v13')
    final_store(X1, 's61', X1_RDY)
    stamp('s34', 6)
    E('s_add_u32 s34, s34, 1')
    E('s_cmp_le_u32 s34, 32')
    a.flush()
    E('s_cbranch_scc1 LB_item')
    E('s_waitcnt vmcnt(0)')
    E('s_endpgm')


def add_resid():
    for j in range(2):
        E(f'v_cvt_pk_bf16_f32 v{34 + j}, v{24 + 2 * j}, v{25 + 2 * j}')
    for j in range(2):
        E(f'v_lshlrev_b32 v{24 + 2 * j}, 16, v{34 + j}')
        E(f'v_and_b32 v{25 + 2 * j}, 0xffff0000, v{34 + j}')
        E(f'v_lshlrev_b32 v{28 + 2 * j}, 16, v{22 + j}')
        E(f'v_and_b32 v{29 + 2 * j}, 0xffff0000, v{22 + j}')
    for k in range(4):
        E(f'v_add_f32 v{24 + k}, v{24 + k}, v{28 + k}')
    for j in range(2):
        E(f'v_cvt_pk_bf16_f32 v{32 + j}, v{24 + 2 * j}, v{25 + 2 * j}')


def final_store(dst, lreg, rdy):
    add_resid()
    E(f's_lshl_b32 s23, {lreg}, 21')
    E(f's_add_u32 s23, s23, {dst}')
    E('v_add_u32 v125, s23, v124')
    E(f'global_store_dwordx2 v125, v[32:33], {WS} sc1')
    E('s_waitcnt vmcnt(0)')
    E(f's_lshl_b32 s23, {lreg}, 5')
    E('s_add_u32 s23, s23, s35')
    E('s_lshl_b32 s23, s23, 7')
    E('s_add_u32 s23, s23, s52')
    E('s_lshl_b32 s23, s23, 2')
    E(f's_add_u32 s23, s23, {rdy}')
    E('v_mov_b32 v124, s23')
    E('v_mov_b32 v125, 1')
    E(f'global_store_dword v124, v125, {WS} sc1')


def gen_F():
    a.label('LroleF')
    E(f's_load_dwordx2 s[12:13], s[0:1], {KA["wg"]}')
    E(f's_load_dwordx2 s[14:15], s[0:1], {KA["wu"]}')
    E(f's_load_dwordx2 s[16:17], s[0:1], {KA["wd"]}')
    E('s_waitcnt lgkmcnt(0)')
    lane_consts()
    E('s_sub_u32 s56, s22, 3')
    E('s_lshl_b32 s52, s21, 2')
    E('s_add_u32 s52, s52, s20')
    E('s_cmp_ge_u32 s21, 28')
    E('s_cbranch_scc1 LF_wdone')
    STR = 144
    UPO = 512 * STR
    E('v_lshrrev_b32 v24, 3, v0')
    E('s_lshl_b32 s23, s20, 7')
    E('v_add_u32 v24, s23, v24')
    E('v_and_b32 v25, 7, v0')
    E('s_movk_i32 s23, 3584')
    E('v_mul_lo_u32 v26, v24, s23')
    E('v_lshl_add_u32 v26, v25, 4, v26')
    E('s_lshl_b32 s23, s21, 7')
    E('v_add_u32 v26, s23, v26')
    E(f'v_mul_u32_u24 v27, {STR}, v24')
    E('v_lshl_add_u32 v27, v25, 4, v27')
    for mi, ptr in enumerate(('s[12:13]', 's[14:15]')):
        for b in range(2):
            for i in range(8):
                ii = b * 8 + i
                E(f'v_add_u32 v28, {ii * 8 * 3584}, v26')
                E(f'global_load_dwordx4 v[{32 + 4 * i}:{35 + 4 * i}], v28, {ptr}')
            for i in range(8):
                ii = b * 8 + i
                E(f's_waitcnt vmcnt({7 - i})')
                off = ii * 8 * STR
                if mi == 1:
                    E(f'v_add_u32 v28, {UPO}, v27')
                    E(f'ds_write_b128 v28, v[{32 + 4 * i}:{35 + 4 * i}] offset:{off}')
                else:
                    E(f'ds_write_b128 v27, v[{32 + 4 * i}:{35 + 4 * i}] offset:{off}')
    barrier()
    E('v_lshrrev_b32 v26, 2, v1')
    E('v_lshl_add_u32 v26, v2, 3, v26')
    E(f'v_mul_u32_u24 v26, {STR}, v26')
    E('v_and_b32 v27, 3, v1')
    E('v_lshl_add_u32 v26, v27, 3, v26')
    E('s_lshl_b32 s24, s20, 5')
    E('v_add_u32 v26, s24, v26')
    E(f'v_add_u32 v27, {8 * 32 * STR}, v26')
    E(f'v_add_u32 v28, {UPO}, v26')
    E(f'v_add_u32 v29, {UPO + 8 * 32 * STR}, v26')
    for mi in range(2):
        for ks in range(16):
            r = 64 * mi + 4 * ks
            base = 26 + 2 * mi + ks // 8
            off = (ks % 8) * 32 * STR
            E(f'ds_read_b64_tr_b16 a[{r}:{r + 1}], v{base} offset:{off}')
            E(f'ds_read_b64_tr_b16 a[{r + 2}:{r + 3}], v{base} offset:{off + 4 * STR}')
    barrier()
    STR = 1040
    E('s_lshl_b32 s23, s21, 16')
    E('s_lshl_b32 s24, s20, 14')
    E('s_add_u32 s23, s23, s24')
    E('v_add_u32 v24, s23, v7')
    E(f's_mul_i32 s24, s20, {16 * STR}')
    E('v_add_u32 v25, s24, v7')
    for b in range(2):
        E(f'v_add_u32 v26, {b * 8192}, v24')
        E(f'v_add_u32 v27, {b * 8192 + 4096}, v24')
        for i in range(8):
            E(f'global_load_dwordx4 v[{32 + 4 * i}:{35 + 4 * i}], v{26 + i // 4}, s[16:17] offset:{(i % 4) * 1024}')
        for i in range(8):
            E(f's_waitcnt vmcnt({7 - i})')
            E(f'ds_write_b128 v25, v[{32 + 4 * i}:{35 + 4 * i}] offset:{(b * 8 + i) * STR}')
    barrier()
    E('v_lshrrev_b32 v26, 2, v1')
    E('v_lshl_add_u32 v26, v2, 2, v26')
    E(f'v_mul_u32_u24 v26, {STR}, v26')
    E('v_and_b32 v27, 3, v1')
    E('v_lshl_add_u32 v26, v27, 3, v26')
    E('s_lshl_b32 s24, s20, 8')
    E('v_add_u32 v26, s24, v26')
    for ni in range(8):
        for k2 in range(2):
            r = 128 + (ni * 2 + k2) * 4
            off = k2 * 32 * STR + ni * 32
            E(f'ds_read_b64_tr_b16 v[{r}:{r + 1}], v26 offset:{off}')
            E(f'ds_read_b64_tr_b16 v[{r + 2}:{r + 3}], v26 offset:{off + 16 * STR}')
    E('s_waitcnt lgkmcnt(0)')
    a.label('LF_wdone')
    E('s_barrier')
    team_consts()
    XN = 0
    XH = 65536
    frag_bases(XN)
    E('v_lshlrev_b32 v21, 3, v0')
    E(f'v_add_u32 v21, {XH}, v21')
    E('s_lshl_b32 s23, s20, 11')
    E('v_add_u32 v20, s23, v21')
    E('s_mov_b32 s34, 1')
    table_ptr('Ltab_F', 5)
    a.flush()
    a.label('LF_item')
    E('s_lshl_b32 s23, s34, 2')
    E('s_sub_u32 s23, s23, 4')
    E('s_load_dword s31, s[54:55], s23')
    E('s_waitcnt lgkmcnt(0)')
    E('s_cmp_ge_u32 s31, 64')
    E('s_cbranch_scc1 LF_done')
    E('s_and_b32 s35, s31, 31')
    E('s_lshr_b32 s61, s31, 5')
    stamp('s34', 0)
    E('s_lshl_b32 s23, s61, 5')
    E('s_add_u32 s23, s23, s35')
    E('s_lshl_b32 s23, s23, 9')
    E(f's_add_u32 s23, s23, {X1_RDY}')
    E('v_lshlrev_b32 v124, 3, v0')
    E('v_add_u32 v124, s23, v124')
    L = poll_begin()
    E(f'global_load_dwordx2 v[24:25], v124, {WS} sc1')
    E('s_waitcnt vmcnt(0)')
    E('v_and_b32 v24, v24, v25')
    E('v_cmp_ne_u32 s[40:41], 1, v24')
    poll_end(L, 8)
    stamp('s34', 1)
    E('s_lshl_b32 s33, s61, 21')
    E('s_lshl_b32 s23, s35, 16')
    E('s_add_u32 s33, s33, s23')
    E(f's_add_u32 s33, s33, {X1}')
    E('v_add_u32 v125, s33, v13')
    E(f'global_load_dwordx2 v[22:23], v125, {WS} sc1')
    E('s_cmp_ge_u32 s21, 28')
    E('s_cbranch_scc1 LF_cons')
    done_pre()
    layernorm64(WS, 's33', XN)
    barrier()
    stamp('s34', 2)

    def rd(ks):
        for rt in range(4):
            r = 56 + 16 * (ks % 2) + 4 * rt
            E(f'ds_read_b128 v[{r}:{r + 3}], v{3 + ks % 4} offset:{rt * 16384 + (ks // 4) * 256}')
    rd(0)
    rd(1)
    for ks in range(16):
        E(f's_waitcnt lgkmcnt({4 if ks < 15 else 0})')
        for rt in range(4):
            r = 56 + 16 * (ks % 2) + 4 * rt
            for mi in range(2):
                ar = 24 + 16 * mi + 4 * rt
                acc = f'v[{ar}:{ar + 3}]'
                E(f'v_mfma_f32_16x16x32_bf16 {acc}, a[{64 * mi + 4 * ks}:{64 * mi + 4 * ks + 3}], v[{r}:{r + 3}], {acc if ks else 0}')
        if ks + 2 < 16:
            rd(ks + 2)
    E('s_mov_b32 s23, 0x3d372713')
    E('s_mov_b32 s24, 0xc0135761')
    for k in range(0, 16, 2):
        E(f'v_cvt_pk_bf16_f32 v56, v{24 + k}, v{25 + k}')
        E(f'v_cvt_pk_bf16_f32 v57, v{40 + k}, v{41 + k}')
        E(f'v_lshlrev_b32 v{24 + k}, 16, v56')
        E(f'v_and_b32 v{25 + k}, 0xffff0000, v56')
        E(f'v_lshlrev_b32 v{40 + k}, 16, v57')
        E(f'v_and_b32 v{41 + k}, 0xffff0000, v57')
    for k in range(16):
        g = 24 + k
        t = 56 + k
        E(f'v_mul_f32 v{t}, v{g}, v{g}')
        E(f'v_mul_f32 v{t}, s23, v{t}')
        E(f'v_fma_f32 v{t}, v{t}, v{g}, v{g}')
        E(f'v_mul_f32 v{t}, s24, v{t}')
    for k in range(16):
        E(f'v_exp_f32 v{56 + k}, v{56 + k}')
    for k in range(16):
        E(f'v_add_f32 v{56 + k}, 1.0, v{56 + k}')
    for k in range(16):
        E(f'v_rcp_f32 v{56 + k}, v{56 + k}')
    for k in range(16):
        E(f'v_mul_f32 v{24 + k}, v{24 + k}, v{56 + k}')
    for k in range(0, 16, 2):
        E(f'v_cvt_pk_bf16_f32 v56, v{24 + k}, v{25 + k}')
        E(f'v_lshlrev_b32 v{24 + k}, 16, v56')
        E(f'v_and_b32 v{25 + k}, 0xffff0000, v56')
    for k in range(16):
        E(f'v_mul_f32 v{24 + k}, v{24 + k}, v{40 + k}')
    for rt in range(4):
        for j in range(2):
            E(f'v_cvt_pk_bf16_f32 v{56 + 2 * rt + j}, v{24 + 4 * rt + 2 * j}, v{25 + 4 * rt + 2 * j}')
        E(f'ds_write_b64 v20, v[{56 + 2 * rt}:{57 + 2 * rt}] offset:{rt * 512}')
    barrier()
    for rt in range(4):
        for k2 in range(2):
            r = 24 + 8 * rt + 4 * k2
            E(f'ds_read_b64 v[{r}:{r + 1}], v21 offset:{(2 * k2) * 2048 + rt * 512}')
            E(f'ds_read_b64 v[{r + 2}:{r + 3}], v21 offset:{(2 * k2 + 1) * 2048 + rt * 512}')
    stamp('s34', 3)
    wait_done(9)
    E('s_waitcnt lgkmcnt(0)')
    for i in range(8):
        accs = [88 + 4 * rt for rt in range(4)]
        for k2 in range(2):
            wr = 128 + (i * 2 + k2) * 4
            for rt in range(4):
                r = 24 + 8 * rt + 4 * k2
                ac = f'v[{accs[rt]}:{accs[rt] + 3}]'
                E(f'v_mfma_f32_16x16x32_bf16 {ac}, v[{wr}:{wr + 3}], v[{r}:{r + 3}], {ac if k2 else 0}')
        partial_store(i, accs)
    stamp('s34', 4)
    publish_and_reduce(28, 10, 'LF_cons')
    stamp('s34', 5)
    E('s_lshl_b32 s23, s35, 16')
    E('v_add_u32 v124, s23, v13')
    add_resid()
    Lo = a.newlabel('Lfo')
    Lo2 = a.newlabel('Lfo')
    E('s_cmp_eq_u32 s61, 0')
    E(f's_cbranch_scc0 {Lo}')
    E(f'v_add_u32 v125, {X2}, v124')
    E(f'global_store_dwordx2 v125, v[32:33], {WS} sc1')
    E('s_waitcnt vmcnt(0)')
    E('s_lshl_b32 s23, s35, 7')
    E('s_add_u32 s23, s23, s52')
    E('s_lshl_b32 s23, s23, 2')
    E(f's_add_u32 s23, s23, {X2_RDY}')
    E('v_mov_b32 v124, s23')
    E('v_mov_b32 v125, 1')
    E(f'global_store_dword v124, v125, {WS} sc1')
    E(f's_branch {Lo2}')
    a.label(Lo)
    E(f'global_store_dwordx2 v124, v[32:33], {OUT}')
    a.label(Lo2)
    E('s_add_u32 s34, s34, 1')
    a.flush()
    E('s_branch LF_item')
    a.label('LF_done')
    stamp('s94', 5)
    E('s_waitcnt vmcnt(0)')
    E('s_endpgm')


def gen_mega():
    a.lines.append('.globl mega_kernel\n.p2align 8\n.type mega_kernel,@function\nmega_kernel:')
    E('s_cmp_ge_u32 s2, 256')
    E('s_cbranch_scc1 Lmega_exit')
    E(f's_load_dwordx2 s[4:5], s[0:1], {KA["ws"]}')
    E(f's_load_dwordx2 s[6:7], s[0:1], {KA["x"]}')
    E(f's_load_dwordx2 s[8:9], s[0:1], {KA["out"]}')
    E(f's_load_dwordx2 s[10:11], s[0:1], {KA["dbg"]}')
    E('v_lshrrev_b32 v1, 6, v0')
    E('v_readfirstlane_b32 s20, v1')
    E('v_and_b32 v0, 63, v0')
    E('s_getreg_b32 s22, hwreg(HW_REG_XCC_ID)')
    E('s_and_b32 s22, s22, 7')
    E('s_waitcnt lgkmcnt(0)')
    E('s_cmp_lg_u32 s20, 0')
    E('s_cbranch_scc1 Lticket_skip')
    E('s_mov_b64 exec, 1')
    E('s_lshl_b32 s23, s22, 2')
    E('v_mov_b32 v2, s23')
    E('v_mov_b32 v3, 1')
    E(f'global_atomic_add v4, v2, v3, {DBG} sc0 sc1')
    E('v_mov_b32 v5, 0')
    E('s_waitcnt vmcnt(0)')
    E('ds_write_b32 v5, v4')
    E('s_mov_b64 exec, -1')
    a.label('Lticket_skip')
    barrier()
    E('v_mov_b32 v5, 0')
    E('ds_read_b32 v4, v5')
    E('s_waitcnt lgkmcnt(0)')
    E('v_readfirstlane_b32 s21, v4')
    E('s_barrier')
    E('s_cmp_ge_u32 s21, 32')
    E('s_cbranch_scc1 Lmega_exit')
    E('s_mov_b32 s94, 100')
    lane_consts()
    stamp('s94', 0)
    E('s_cmp_eq_u32 s22, 0')
    E('s_cbranch_scc1 Lchain')
    E('s_cmp_le_u32 s22, 2')
    E('s_cbranch_scc1 LroleA')
    E('s_cmp_le_u32 s22, 4')
    E('s_cbranch_scc1 LroleB')
    E('s_branch LroleF')
    a.label('Lmega_exit')
    E('s_endpgm')
    gen_chain()
    tabs = gen_A()
    gen_B()
    gen_F()
    a.lines.append('.p2align 6')
    a.lines.append('Ltab_A:')
    for t in tabs:
        t = t + [255] * (64 - len(t))
        a.lines.append('.long ' + ', '.join(str(x) for x in t))
    a.lines.append('Ltab_F:')
    for t in make_tables(3, 0, 0):
        t = t + [255] * (64 - len(t))
        a.lines.append('.long ' + ', '.join(str(x) for x in t))


HEADER = open('interleave_layers__memory_aug_recurrent_mem_tr__geglu_ffn__prompt.s.ref').read().split('; Override launch')[0]

nwg_init = ZERO_END // 4096
out = HEADER
out += f'; @launch kernel=init_kernel grid=({nwg_init},1,1) block=(256,1,1) lds=0\n'
out += '; @launch kernel=mega_kernel grid=(256,1,1) block=(256,1,1) lds=163840\n'
out += '.amdgcn_target "amdgcn-amd-amdhsa--gfx950"\n.text\n'
gen_init()
gen_mega()
out += a.text()
out += '''.section .rodata,"a"
.p2align 6
.amdhsa_kernel init_kernel
  .amdhsa_next_free_vgpr 8
  .amdhsa_next_free_sgpr 16
  .amdhsa_accum_offset 8
  .amdhsa_group_segment_fixed_size 0
  .amdhsa_kernarg_size 112
  .amdhsa_user_sgpr_count 2
  .amdhsa_user_sgpr_kernarg_segment_ptr 1
  .amdhsa_system_sgpr_workgroup_id_x 1
.end_amdhsa_kernel
.p2align 6
.amdhsa_kernel mega_kernel
  .amdhsa_next_free_vgpr 512
  .amdhsa_next_free_sgpr 102
  .amdhsa_accum_offset 256
  .amdhsa_group_segment_fixed_size 0
  .amdhsa_kernarg_size 112
  .amdhsa_user_sgpr_count 2
  .amdhsa_user_sgpr_kernarg_segment_ptr 1
  .amdhsa_system_sgpr_workgroup_id_x 1
.end_amdhsa_kernel
'''
open(sys.argv[1], 'w').write(out)
print('instructions:', a.ninstr, 'bytes:', len(out))
```

```python
import sys
from asmlib import Asm

LAG = int(sys.argv[2]) if len(sys.argv) > 2 else 10
import os
NSTEP = int(os.environ.get("NSTEP", 64 + LAG))
TMO = int(os.environ.get("TMO", 400000))

KV_RDY = 0x0
MEM_RDY = 0x10000
X1_RDY = 0x20000
X2_RDY = 0x28000
PF = 0x2C000
DONE = 0x2D000
CSLICE = 0x30000
ZBLK = 0x38000
CPART = 0x40000
ZERO_END = 0x140000
MEMKV = 0x200000
X1 = 0x1A00000
X2 = 0x1E00000
BPART = 0x2000000
QKV = 0x3000000

KA = dict(x=0, mem0=8, wq=16, wk=24, wv=32, wo=40, wg=64, wu=72, wd=80, out=88, dbg=96, ws=104)

a = Asm()
E = a


def v(i, n=1):
    return f'v{i}' if n == 1 else f'v[{i}:{i + n - 1}]'


def ag(i, n=1):
    return f'a{i}' if n == 1 else f'a[{i}:{i + n - 1}]'


def s(i, n=1):
    return f's{i}' if n == 1 else f's[{i}:{i + n - 1}]'


WS = 's[4:5]'
XIN = 's[6:7]'
OUT = 's[8:9]'
DBG = 's[10:11]'


def timeout_exit(code):
    sv = a.nvm
    E(f'v_mov_b32 v126, {64 + 4 * code}')
    E(f'v_mov_b32 v127, {0x100 + code}')
    E(f'global_store_dword v126, v127, {DBG}')
    E('s_waitcnt vmcnt(0)')
    E('s_endpgm')
    a.nvm = sv


def poll_begin():
    L = a.newlabel('Lpoll')
    E('s_mov_b32 s90, 0')
    a.flush()
    a.label(L)
    return L


def poll_end(L, code):
    Ld = a.newlabel('Lpd')
    E('s_cmp_eq_u64 s[40:41], 0')
    E(f's_cbranch_scc1 {Ld}')
    E('s_add_u32 s90, s90, 1')
    E(f's_cmp_lt_u32 s90, {TMO}')
    a.flush()
    E(f's_cbranch_scc1 {L}')
    timeout_exit(code)
    a.label(Ld)


DUMP = int(os.environ.get("DUMP", 0))
def dump(slot, r0, n):
    if not DUMP:
        return
    E('s_lshl_b32 s23, s21, 2')
    E('s_add_u32 s23, s23, s20')
    E('s_lshl_b32 s23, s23, 13')
    E(f's_add_u32 s23, s23, {0xA000000 + slot * 0x100000}')
    E('v_add_u32 v127, s23, v7')
    for k in range(n // 4):
        E(f'global_store_dwordx4 v127, v[{r0 + 4 * k}:{r0 + 4 * k + 3}], {WS} offset:{k * 1024}')
    E('s_waitcnt vmcnt(0)')


STAMP = int(os.environ.get("STAMP", 0))
def stamp(idxreg, k):
    if not STAMP:
        return
    E('s_memrealtime s[92:93]')
    E(f's_lshl_b32 s23, {idxreg}, 6')
    E('s_lshl_b32 s24, s22, 16')
    E('s_add_u32 s23, s23, s24')
    E(f's_add_u32 s23, s23, {0xB000000 + 4 * k}')
    E('s_or_b32 s24, s20, s21')
    E('s_cmp_lg_u32 s24, 0')
    E(f's_cselect_b32 s23, {0xB100000}, s23')
    E('v_mov_b32 v126, s23')
    E('s_waitcnt lgkmcnt(0)')
    E('v_mov_b32 v127, s92')
    E(f'global_store_dword v126, v127, {WS}')


def stampval(idxreg, k, sreg):
    if not STAMP:
        return
    L = a.newlabel('Lst')
    E('s_or_b32 s23, s20, s21')
    E('s_cmp_lg_u32 s23, 0')
    E(f's_cbranch_scc1 {L}')
    E(f's_lshl_b32 s23, {idxreg}, 6')
    E('s_lshl_b32 s24, s22, 16')
    E('s_add_u32 s23, s23, s24')
    E(f's_add_u32 s23, s23, {0xB000000 + 4 * k}')
    E('v_mov_b32 v126, s23')
    E(f'v_mov_b32 v127, {sreg}')
    E(f'global_store_dword v126, v127, {WS}')
    a.flush()
    a.label(L)


def grid_wait():
    E('v_mov_b32 v124, 32')
    L = poll_begin()
    E(f'global_load_dword v125, v124, {DBG} sc1')
    E('s_waitcnt vmcnt(0)')
    E('s_movk_i32 s23, 0x100')
    E('v_cmp_gt_u32 s[40:41], s23, v125')
    poll_end(L, 11)


def barrier():
    E('s_waitcnt lgkmcnt(0)')
    E('s_barrier')


def gen_init():
    a.lines.append('.globl init_kernel\n.p2align 8\n.type init_kernel,@function\ninit_kernel:')
    nwg = ZERO_END // 4096
    E(f's_cmp_ge_u32 s2, {nwg}')
    E('s_cbranch_scc1 Linit_done')
    E(f's_load_dwordx2 s[4:5], s[0:1], {KA["ws"]}')
    E('s_lshl_b32 s3, s2, 12')
    E('v_lshlrev_b32 v1, 4, v0')
    E('v_add_u32 v1, s3, v1')
    E('v_mov_b32 v4, 0')
    E('v_mov_b32 v5, 0')
    E('v_mov_b32 v6, 0')
    E('v_mov_b32 v7, 0')
    E('s_waitcnt lgkmcnt(0)')
    E('global_store_dwordx4 v1, v[4:7], s[4:5]')
    E('s_waitcnt vmcnt(0)')
    a.label('Linit_done')
    E('s_endpgm')
    return nwg


def lane_consts():
    E('v_and_b32 v1, 15, v0')
    E('v_lshrrev_b32 v2, 4, v0')
    E('v_lshlrev_b32 v7, 4, v0')


def frag_bases(region):
    for q in range(4):
        E(f'v_add_u32 v124, {4 * q}, v2')
        E('v_xor_b32 v124, v124, v1')
        E('v_lshlrev_b32 v124, 4, v124')
        E('v_lshl_add_u32 v124, v1, 10, v124')
        E(f'v_add_u32 v{3 + q}, {region}, v124')


def load_wqkv():
    STR = 272
    E('s_lshl_b32 s23, s20, 7')
    E('v_add_u32 v24, s23, v2')
    E('v_lshlrev_b32 v25, 13, v24')
    E('s_lshl_b32 s24, s21, 8')
    E('v_lshl_add_u32 v25, v1, 4, v25')
    E('v_add_u32 v25, s24, v25')
    E(f'v_mul_u32_u24 v26, {STR}, v24')
    E('v_lshl_add_u32 v26, v1, 4, v26')
    E('v_lshrrev_b32 v27, 2, v1')
    E('v_lshl_add_u32 v27, v2, 3, v27')
    E(f'v_mul_u32_u24 v27, {STR}, v27')
    E('v_and_b32 v28, 3, v1')
    E('v_lshlrev_b32 v28, 3, v28')
    E('v_add_u32 v27, v27, v28')
    E('s_lshl_b32 s23, s20, 6')
    E('v_add_u32 v27, s23, v27')
    for q in range(1, 4):
        E(f'v_add_u32 v{27 + q}, {4 * 32 * STR * q}, v27')
    for mi, (ptr, dst) in enumerate((('s[12:13]', ('a', 0)), ('s[14:15]', ('a', 128)), ('s[16:17]', ('v', 128)))):
        for b in range(4):
            for i in range(8):
                ii = b * 8 + i
                E(f'v_add_u32 v31, {ii * 4 * 8192}, v25')
                E(f'global_load_dwordx4 v[{32 + 4 * i}:{35 + 4 * i}], v31, {ptr}')
            for i in range(8):
                ii = b * 8 + i
                E(f's_waitcnt vmcnt({7 - i})')
                E(f'ds_write_b128 v26, v[{32 + 4 * i}:{35 + 4 * i}] offset:{ii * 4 * STR}')
        barrier()
        for T in range(2):
            for ks in range(16):
                base = 27 + ks // 4
                off = (ks % 4) * 32 * STR + T * 32
                r = dst[1] + (T * 16 + ks) * 4
                p = dst[0]
                E(f'ds_read_b64_tr_b16 {p}[{r}:{r + 1}], v{base} offset:{off}')
                E(f'ds_read_b64_tr_b16 {p}[{r + 2}:{r + 3}], v{base} offset:{off + 4 * STR}')
        barrier()


def wfrag(m, T, ks):
    r = (T * 16 + ks) * 4
    if m == 0:
        return f'a[{r}:{r + 3}]'
    if m == 1:
        return f'a[{128 + r}:{128 + r + 3}]'
    return f'v[{128 + r}:{128 + r + 3}]'


def layernorm64(src, voff_sgpr, region, extra_loads=None):
    E('v_lshrrev_b32 v24, 3, v0')
    E('s_lshl_b32 s23, s20, 3')
    E('v_add_u32 v24, s23, v24')
    E('v_and_b32 v25, 7, v0')
    E('v_lshlrev_b32 v26, 10, v24')
    E('v_lshl_add_u32 v26, v25, 4, v26')
    E(f'v_add_u32 v26, {voff_sgpr}, v26')
    E('v_add_u32 v27, 32768, v26')
    hb = (92, 28)
    seq = [[], []]
    for hf in range(2):
        for i in range(8):
            E(f'global_load_dwordx4 v[{hb[hf] + 4 * i}:{hb[hf] + 3 + 4 * i}], v{26 + hf}, {src} offset:{i * 128} sc1')
            seq[hf].append(a.nvm)
    if extra_loads:
        extra_loads()
    E('v_and_b32 v27, 7, v24')
    E('v_xor_b32 v27, v27, v25')
    E('v_lshlrev_b32 v27, 4, v27')
    E('v_lshl_add_u32 v27, v24, 10, v27')
    E('v_bfe_u32 v25, v24, 3, 1')
    E('v_lshl_add_u32 v27, v25, 7, v27')
    E(f'v_add_u32 v27, {region}, v27')
    E('v_xor_b32 v25, 128, v27')

    def red8(r):
        E(f'v_add_f32_dpp v{r}, v{r}, v{r} quad_perm:[1,0,3,2] row_mask:0xf bank_mask:0xf')
        E(f'v_add_f32_dpp v{r}, v{r}, v{r} quad_perm:[2,3,0,1] row_mask:0xf bank_mask:0xf')
        E(f'v_add_f32_dpp v{r}, v{r}, v{r} row_half_mirror row_mask:0xf bank_mask:0xf')
    for hf in range(2):
        for i in range(8):
            a.wait_vm(seq[hf][i])
            for j in range(4):
                src_r = hb[hf] + 4 * i + j
                d = 60 + 8 * i + 2 * j
                E(f'v_lshlrev_b32 v{d}, 16, v{src_r}')
                E(f'v_and_b32 v{d + 1}, 0xffff0000, v{src_r}')
        E('v_pk_add_f32 v[124:125], v[60:61], v[62:63]')
        for k in range(4, 64, 2):
            E(f'v_pk_add_f32 v[124:125], v[124:125], v[{60 + k}:{61 + k}]')
        E('v_add_f32 v124, v124, v125')
        red8(124)
        E('v_mul_f32 v124, 0xbb000000, v124')
        E('v_mov_b32 v125, v124')
        for k in range(0, 64, 2):
            E(f'v_pk_add_f32 v[{60 + k}:{61 + k}], v[{60 + k}:{61 + k}], v[124:125]')
        E('v_pk_mul_f32 v[124:125], v[60:61], v[60:61]')
        for k in range(2, 64, 2):
            E(f'v_pk_fma_f32 v[124:125], v[{60 + k}:{61 + k}], v[{60 + k}:{61 + k}], v[124:125]')
        E('v_add_f32 v124, v124, v125')
        red8(124)
        E('v_mov_b32 v125, 0x3727c5ac')
        E('v_fmac_f32 v125, 0x3b000000, v124')
        E('v_rsq_f32 v124, v125')
        E('v_mov_b32 v125, v124')
        for i in range(8):
            for j in range(4):
                d = 60 + 8 * i + 2 * j
                E(f'v_pk_mul_f32 v[{d}:{d + 1}], v[{d}:{d + 1}], v[124:125]')
                E(f'v_cvt_pk_bf16_f32 v{60 + 4 * i + j}, v{d}, v{d + 1}')
            E(f'ds_write_b128 v{27 if i % 2 == 0 else 25}, v[{60 + 4 * i}:{63 + 4 * i}] offset:{hf * 32768 + (i >> 1) * 256}')


def xlane_reduce(op, r, t):
    E(f'v_mov_b32 v{t}, v{r}')
    E(f'v_permlane16_swap_b32 v{r}, v{t}')
    E(f'{op} v{r}, v{r}, v{t}')
    E(f'v_mov_b32 v{t}, v{r}')
    E(f'v_permlane32_swap_b32 v{r}, v{t}')
    E(f'{op} v{r}, v{r}, v{t}')


SC_LOG2E = 0x3e0293ee


def softmax12(base, t0):
    E(f'v_max3_f32 v{t0}, v{base}, v{base + 1}, v{base + 2}')
    for k in range(3, 11, 2):
        E(f'v_max3_f32 v{t0}, v{t0}, v{base + k}, v{base + k + 1}')
    E(f'v_max_f32 v{t0}, v{t0}, v{base + 11}')
    xlane_reduce('v_max_f32', t0, t0 + 1)
    E(f's_mov_b32 s23, {SC_LOG2E}')
    for k in range(12):
        E(f'v_sub_f32 v{base + k}, v{base + k}, v{t0}')
    for k in range(12):
        E(f'v_mul_f32 v{base + k}, s23, v{base + k}')
    for k in range(12):
        E(f'v_exp_f32 v{base + k}, v{base + k}')
    E(f'v_add_f32 v{t0}, v{base}, v{base + 1}')
    for k in range(2, 12):
        E(f'v_add_f32 v{t0}, v{t0}, v{base + k}')
    xlane_reduce('v_add_f32', t0, t0 + 1)
    E(f'v_rcp_f32 v{t0}, v{t0}')
    for k in range(12):
        E(f'v_mul_f32 v{base + k}, v{base + k}, v{t0}')


def softmax_list(R, t0):
    o = []
    o.append(f'v_max3_f32 v{t0}, v{R[0]}, v{R[1]}, v{R[2]}')
    for k in range(3, 11, 2):
        o.append(f'v_max3_f32 v{t0}, v{t0}, v{R[k]}, v{R[k + 1]}')
    o.append(f'v_max_f32 v{t0}, v{t0}, v{R[11]}')

    def xl(op):
        t = t0 + 1
        o.append(f'v_mov_b32 v{t}, v{t0}')
        o.append(f'v_permlane16_swap_b32 v{t0}, v{t}')
        o.append(f'{op} v{t0}, v{t0}, v{t}')
        o.append(f'v_mov_b32 v{t}, v{t0}')
        o.append(f'v_permlane32_swap_b32 v{t0}, v{t}')
        o.append(f'{op} v{t0}, v{t0}, v{t}')
    xl('v_max_f32')
    o.append(f's_mov_b32 s23, {SC_LOG2E}')
    o.append(f'v_mul_f32 v{t0}, s23, v{t0}')
    for k in range(12):
        o.append(f'v_fma_f32 v{R[k]}, v{R[k]}, s23, -v{t0}')
    for k in range(12):
        o.append(f'v_exp_f32 v{R[k]}, v{R[k]}')
    o.append(f'v_add_f32 v{t0}, v{R[0]}, v{R[1]}')
    for k in range(2, 12):
        o.append(f'v_add_f32 v{t0}, v{t0}, v{R[k]}')
    xl('v_add_f32')
    o.append(f'v_rcp_f32 v{t0}, v{t0}')
    for k in range(12):
        o.append(f'v_mul_f32 v{R[k]}, v{R[k]}, v{t0}')
    return o


WOF = 0
MEMT = 131072
XS = 147456
XO_REL = 12288


def gen_chain():
    a.label('Lchain')
    E(f's_load_dwordx2 s[12:13], s[0:1], {KA["wq"]}')
    E(f's_load_dwordx2 s[14:15], s[0:1], {KA["wk"]}')
    E(f's_load_dwordx2 s[16:17], s[0:1], {KA["wv"]}')
    E(f's_load_dwordx2 s[18:19], s[0:1], {KA["wo"]}')
    E(f's_load_dwordx2 s[48:49], s[0:1], {KA["mem0"]}')
    E('s_waitcnt lgkmcnt(0)')
    lane_consts()
    load_wqkv()
    stamp('s94', 1)
    STG = 131072
    STR = 1040
    E('s_lshl_b32 s23, s21, 17')
    E('s_lshl_b32 s24, s20, 12')
    E('s_add_u32 s23, s23, s24')
    E('v_add_u32 v24, s23, v7')
    E(f's_mul_i32 s24, s20, {4 * STR}')
    E('v_add_u32 v25, s24, v7')
    E(f'v_add_u32 v25, {STG}, v25')
    E('v_lshrrev_b32 v26, 2, v1')
    E('v_lshl_add_u32 v26, v2, 2, v26')
    E(f'v_mul_u32_u24 v26, {STR}, v26')
    E('v_and_b32 v27, 3, v1')
    E('v_lshl_add_u32 v26, v27, 3, v26')
    E('s_lshl_b32 s24, s20, 8')
    E('v_add_u32 v26, s24, v26')
    E(f'v_add_u32 v26, {STG}, v26')
    E('s_lshl_b32 s24, s20, 13')
    E('v_add_u32 v27, s24, v7')
    E('v_add_u32 v28, 65536, v27')
    for c in range(8):
        ks, hf = c // 2, c % 2
        E(f'v_add_u32 v29, {c * 16 * 1024}, v24')
        for i in range(4):
            E(f'global_load_dwordx4 v[{32 + 4 * i}:{35 + 4 * i}], v29, s[18:19] offset:{i * 1024}')
        for i in range(4):
            E(f's_waitcnt vmcnt({3 - i})')
            E(f'ds_write_b128 v25, v[{32 + 4 * i}:{35 + 4 * i}] offset:{i * STR}')
        barrier()
        for i in range(8):
            E(f'ds_read_b64_tr_b16 v[{48 + 2 * i}:{49 + 2 * i}], v26 offset:{i * 32}')
        for i in range(8):
            E(f's_waitcnt lgkmcnt({7 - i})')
            dreg = 27 if ks < 2 else 28
            E(f'ds_write_b64 v{dreg}, v[{48 + 2 * i}:{49 + 2 * i}] offset:{(ks % 2) * 32768 + i * 1024 + 8 * hf}')
        barrier()
    stamp('s94', 2)
    frag_bases(MEMT)
    E('v_lshrrev_b32 v24, 2, v0')
    E('v_and_b32 v25, 3, v0')
    E('v_lshrrev_b32 v26, 1, v25')
    E('v_xor_b32 v26, v26, v24')
    E('v_lshlrev_b32 v26, 4, v26')
    E('v_and_b32 v27, 1, v25')
    E('v_lshlrev_b32 v27, 3, v27')
    E('v_lshl_add_u32 v27, v24, 10, v27')
    E('s_lshl_b32 s23, s20, 8')
    E('v_add_u32 v27, s23, v27')
    E(f'v_add_u32 v27, {MEMT}, v27')
    E('v_or_b32 v8, v27, v26')
    E(f'v_add_u32 v21, {XS}, v7')
    E('s_mul_i32 s23, s20, 3072')
    E('v_add_u32 v9, s23, v21')
    E('s_lshl_b32 s23, s20, 10')
    E('v_add_u32 v20, s23, v21')
    E(f'v_add_u32 v20, {XO_REL}, v20')
    E('v_mov_b32 v10, 0xfffffffe')
    E('s_lshl_b32 s23, s20, 17')
    E('s_lshl_b32 s24, s21, 9')
    E('s_add_u32 s23, s23, s24')
    E(f's_add_u32 s23, s23, {CPART}')
    E('v_lshlrev_b32 v24, 5, v1')
    E('v_lshl_add_u32 v24, v2, 3, v24')
    E('v_add_u32 v11, s23, v24')
    E('v_lshrrev_b32 v24, 2, v1')
    E('v_and_b32 v25, 3, v1')
    E('s_lshl_b32 s23, s20, 2')
    E('v_add_u32 v26, s23, v25')
    E('v_lshlrev_b32 v26, 5, v26')
    E('v_lshl_add_u32 v26, v24, 3, v26')
    E('v_lshl_add_u32 v26, v2, 9, v26')
    E('s_lshl_b32 s24, s21, 14')
    E(f's_add_u32 s24, s24, {CPART}')
    E('v_add_u32 v12, s24, v26')
    E('v_add_u32 v26, s23, v25')
    E('v_lshl_add_u32 v27, v26, 2, v24')
    E('v_lshlrev_b32 v27, 4, v27')
    E('s_lshl_b32 s24, s21, 10')
    E(f's_add_u32 s24, s24, {CSLICE}')
    E('v_add_u32 v13, s24, v27')
    E('v_and_b32 v27, 7, v26')
    E('v_lshlrev_b32 v27, 10, v27')
    E('v_lshl_add_u32 v27, v24, 3, v27')
    E('s_lshl_b32 s24, s21, 5')
    E('v_add_u32 v27, s24, v27')
    E('global_load_dwordx2 v[28:29], v27, s[48:49]')
    E('v_cmp_le_u32 s[50:51], 8, v26')
    E('s_lshl_b32 s23, s20, 13')
    E(f's_add_u32 s23, s23, {CSLICE}')
    E('v_add_u32 v14, s23, v7')
    E('v_add_u32 v15, 4096, v14')
    E('s_lshl_b32 s23, s20, 13')
    E('v_add_u32 v22, s23, v7')
    E('v_add_u32 v23, 65536, v22')
    E('s_waitcnt vmcnt(0)')
    E('v_mov_b32 v16, v28')
    E('v_mov_b32 v17, v29')
    E('v_mov_b32 v18, 0')
    E('v_mov_b32 v19, 0')
    E('v_cmp_le_u32 s[44:45], 8, v1')
    E('v_lshrrev_b32 v24, 1, v2')
    E('v_lshrrev_b32 v25, 3, v1')
    E('v_cmp_eq_u32 s[46:47], v24, v25')
    for r in range(80, 112):
        E(f'v_mov_b32 v{r}, 0')
    E('v_lshrrev_b32 v24, 2, v0')
    E('v_and_b32 v24, 7, v24')
    E('v_lshlrev_b32 v24, 10, v24')
    E('v_and_b32 v25, 3, v0')
    E('v_lshl_add_u32 v24, v25, 3, v24')
    E('s_lshl_b32 s23, s20, 8')
    E('v_add_u32 v24, s23, v24')
    for i in range(8):
        E(f'global_load_dwordx2 v[{48 + 2 * i}:{49 + 2 * i}], v24, s[48:49] offset:{i * 32}')
    for i in range(8):
        E(f's_waitcnt vmcnt({7 - i})')
        E(f'v_xor_b32 v25, {i << 5}, v8')
        E(f'ds_write_b64 v25, v[{48 + 2 * i}:{49 + 2 * i}]')
    E('s_mov_b32 s30, 0')
    E('s_lshl_b32 s52, s21, 2')
    E('s_add_u32 s52, s52, s20')
    E('s_mul_i32 s53, s21, 24576')
    E('s_lshl_b32 s23, s20, 10')
    E('s_add_u32 s53, s53, s23')
    E(f's_add_u32 s53, s53, {QKV}')

    E('s_lshl_b32 s23, s20, 10')
    E(f's_add_u32 s54, s23, {ZBLK}')

    def blockbase(dst, segreg, l):
        E(f's_add_u32 s23, {segreg}, {l * 64}')
        E(f's_mul_i32 s23, s23, {32 * 24576}')
        E('s_add_u32 s23, s23, s53')
        E(f's_cmp_lt_u32 {segreg}, 64')
        E(f's_cselect_b32 {dst}, s23, s54')

    def flag_addr(segreg, l):
        E(f's_min_u32 s23, {segreg}, 63')
        E(f's_add_u32 s23, s23, {l * 64}')
        E('s_lshl_b32 s23, s23, 7')
        E('s_add_u32 s23, s23, s52')
        E('s_lshl_b32 s23, s23, 2')
        E('v_mov_b32 v124, s23')

    def flag_pre(segreg, l):
        flag_addr(segreg, l)
        E(f'global_load_dword v{18 + l}, v124, {WS} offset:{KV_RDY} sc1')

    def flag_sync(segreg, l):
        flag_addr(segreg, l)
        L = poll_begin()
        E(f'global_load_dword v125, v124, {WS} offset:{KV_RDY} sc1')
        E('s_waitcnt vmcnt(0)')
        E('v_cmp_ne_u32 s[40:41], 1, v125')
        poll_end(L, 1)

    def flag_chk(segreg, l):
        Lok = a.newlabel('Lfok')
        E(f's_cmp_ge_u32 {segreg}, 64')
        E(f's_cbranch_scc1 {Lok}')
        E(f'v_cmp_ne_u32 s[40:41], 1, v{18 + l}')
        E('s_cmp_eq_u64 s[40:41], 0')
        E(f's_cbranch_scc1 {Lok}')
        sv = a.nvm
        flag_sync(segreg, l)
        a.nvm = sv
        a.flush()
        a.label(Lok)

    def load_k(segreg, l):
        kb = 80 + 8 * l
        blockbase('s24', segreg, l)
        E('s_add_u32 s24, s24, 8192')
        E('v_add_u32 v124, s24, v7')
        E('v_add_u32 v125, 4096, v124')
        E(f'global_load_dwordx4 v[{kb}:{kb + 3}], v124, {WS} sc1')
        E(f'global_load_dwordx4 v[{kb + 4}:{kb + 7}], v125, {WS} sc1')

    def load_v(segreg, l):
        vb = 96 + 8 * l
        blockbase('s24', segreg, l)
        E('s_lshl_b32 s25, s20, 10')
        E('s_add_u32 s24, s24, s25')
        E('s_add_u32 s24, s24, 16384')
        E('v_add_u32 v124, s24, v7')
        E(f'global_load_dwordx4 v[{vb}:{vb + 3}], v124, {WS} sc1')
        E(f'global_load_dwordx4 v[{vb + 4}:{vb + 7}], v124, {WS} offset:1024 sc1')

    def mem_flag(treg):
        E(f's_lshl_b32 s23, {treg}, 7')
        E('s_add_u32 s23, s23, s52')
        E('s_lshl_b32 s23, s23, 2')
        E('v_mov_b32 v124, s23')
        E('v_mov_b32 v125, 1')
        E('v_add_u32 v124, %d, v124' % MEM_RDY)
        E(f'global_store_dword v124, v125, {WS} sc1')

    grid_wait()
    E('s_mov_b32 s35, 0')
    E(f's_sub_u32 s36, s35, {LAG}')
    flag_sync('s35', 0)
    load_k('s35', 0)
    load_k('s36', 1)
    E('s_mov_b32 s35, 1')
    E(f's_sub_u32 s36, s35, {LAG}')
    flag_pre('s35', 0)
    flag_pre('s36', 1)
    E('s_waitcnt vmcnt(0)')
    a.flush()
    stamp('s94', 3)
    E('s_mov_b32 s39, 95')
    a.label('Lchain_step')

    class Rec:
        def __init__(self):
            self.items = []

        def __enter__(self):
            global E
            self.old = E
            E = self.items.append
            return self.items

        def __exit__(self, *x):
            global E
            E = self.old

    def popper(stream):
        def pop(n):
            for _ in range(n):
                if not stream:
                    return
                it = stream.pop(0)
                if callable(it):
                    it()
                else:
                    E(it)
        return pop
    barrier()
    stamp('s30', 0)
    marks = {}
    with Rec() as S1:
        E(f's_sub_u32 s36, s30, {LAG}')
        load_v('s30', 0)
        load_v('s36', 1)
        S1.append(lambda: marks.__setitem__('V', a.nvm))
        mem_flag('s39')
        E('s_lshl_b32 s23, s30, 5')
        E('s_add_u32 s23, s23, s21')
        E('s_lshl_b32 s23, s23, 13')
        E('s_lshl_b32 s24, s20, 10')
        E('s_add_u32 s23, s23, s24')
        E(f's_add_u32 s33, s23, {MEMKV}')
        E('s_add_u32 s31, s30, 1')
        E('s_and_b32 s31, s31, 1')
    pop = popper(S1)

    def rd(ks):
        E(f'ds_read_b128 v[{48 + 4 * (ks % 8)}:{51 + 4 * (ks % 8)}], v{3 + ks % 4} offset:{(ks // 4) * 256}')
    for ks in range(8):
        rd(ks)
    for ks in range(16):
        E(f's_waitcnt lgkmcnt({min(7, 15 - ks)})')
        mf = f'v[{48 + 4 * (ks % 8)}:{51 + 4 * (ks % 8)}]'
        for m in range(2):
            for T in range(2):
                acc = f'v[{24 + 8 * m + 4 * T}:{27 + 8 * m + 4 * T}]'
                E(f'v_mfma_f32_16x16x32_bf16 {acc}, {wfrag(m, T, ks)}, {mf}, {acc if ks else 0}')
                pop(1)
        if ks + 8 < 16:
            rd(ks + 8)
    pop(1000)
    stamp('s30', 1)
    E('v_add_u32 v124, s33, v7')
    for T in range(2):
        for j in range(2):
            E(f'v_cvt_pk_bf16_f32 v{112 + 2 * T + j}, v{24 + 4 * T + 2 * j}, v{25 + 4 * T + 2 * j}')
            E(f'v_cvt_pk_bf16_f32 v{116 + 2 * T + j}, v{32 + 4 * T + 2 * j}, v{33 + 4 * T + 2 * j}')
    for c in range(2):
        for kt in range(2):
            kb = 80 + 8 * c + 4 * kt
            d = 48 + 8 * c + 4 * kt
            E(f'v_mfma_f32_16x16x32_bf16 v[{d}:{d + 3}], v[{kb}:{kb + 3}], v[112:115], 0')
    E('v_mfma_f32_16x16x32_bf16 v[76:79], v[116:119], v[112:115], 0')
    E(f'global_store_dwordx4 v124, v[116:119], {WS} sc1')
    E('s_add_u32 s35, s30, 1')
    E(f's_sub_u32 s36, s35, {LAG}')
    for k in range(8):
        E(f'v_cndmask_b32 v{68 + k}, v{48 + k}, v{56 + k}, s[44:45]')
    for b in range(3):
        E(f'ds_write_b128 v9, v[{68 + 4 * b}:{71 + 4 * b}] offset:{b * 1024}')
    barrier()
    stamp('s30', 2)
    SR = list(range(112, 120)) + list(range(76, 80))
    seqs = {}

    def xs_reads(half):
        def f():
            for ww in range(2):
                for b in range(3):
                    r = (24 if ww == 0 else 64) + 4 * b
                    E(f'ds_read_b128 v[{r}:{r + 3}], v21 offset:{(2 * half + ww) * 3072 + b * 1024}')
            seqs[half] = a.nds
        return f
    xs_reads(0)()
    fseq = {}

    def rd2(ks):
        E(f'ds_read_b128 v[{48 + 4 * (ks % 4)}:{51 + 4 * (ks % 4)}], v{3 + ks % 4} offset:{(ks // 4) * 256}')
        fseq[ks] = a.nds
    for ks in range(4):
        rd2(ks)
    flag_chk('s35', 0)
    flag_chk('s36', 1)
    with Rec() as S2:
        load_k('s35', 0)
        S2.append(lambda: a.wait_ds(seqs[0]))
        for k in range(0, 12, 2):
            E(f'v_pk_add_f32 v[{SR[k]}:{SR[k] + 1}], v[{24 + k}:{25 + k}], v[{64 + k}:{65 + k}]')
        S2.append(xs_reads(1))
        load_k('s36', 1)
        E('s_add_u32 s35, s30, 2')
        E(f's_sub_u32 s36, s35, {LAG}')
        flag_pre('s35', 0)
        flag_pre('s36', 1)
        E('v_mov_b32 v124, 0xf149f2ca')
        S2.append(lambda: a.wait_ds(seqs[1]))
        for k in range(0, 12, 2):
            E(f'v_pk_add_f32 v[{24 + k}:{25 + k}], v[{24 + k}:{25 + k}], v[{64 + k}:{65 + k}]')
        for k in range(0, 12, 2):
            E(f'v_pk_add_f32 v[{SR[k]}:{SR[k] + 1}], v[{SR[k]}:{SR[k] + 1}], v[{24 + k}:{25 + k}]')
        for k in range(4):
            E(f'v_cndmask_b32 v{SR[8 + k]}, v124, v{SR[8 + k]}, s[46:47]')
        for it in softmax_list(SR, 124):
            E(it)
        for j in range(4):
            E(f'v_cvt_pk_bf16_f32 v{24 + j}, v{SR[2 * j]}, v{SR[2 * j + 1]}')
        for j in range(2):
            E(f'v_cvt_pk_bf16_f32 v{36 + j}, v{SR[8 + 2 * j]}, v{SR[9 + 2 * j]}')
        for j in range(4):
            E(f'v_cndmask_b32 v{28 + j}, v{24 + j}, 0, s[44:45]')
            E(f'v_cndmask_b32 v{32 + j}, 0, v{24 + j}, s[44:45]')
    pop = popper(S2)
    per = (len(S2) + 31) // 32
    for ks in range(16):
        a.wait_ds(fseq[ks])
        mf = f'v[{48 + 4 * (ks % 4)}:{51 + 4 * (ks % 4)}]'
        for T in range(2):
            acc = f'v[{40 + 4 * T}:{43 + 4 * T}]'
            E(f'v_mfma_f32_16x16x32_bf16 {acc}, {mf}, {wfrag(2, T, ks)}, {acc if ks else 0}')
            pop(per)
        if ks + 4 < 16:
            rd2(ks + 4)
    pop(1000)
    SETS = (48, 24, 64)

    def rdwo(i):
        st = SETS[i % 3]
        for ks in range(4):
            E(f'ds_read_b128 v[{st + 4 * ks}:{st + 3 + 4 * ks}], v{22 + ks // 2} offset:{(ks % 2) * 32768 + i * 1024}')
        seqs['wo', i] = a.nds
    rdwo(0)
    for T in range(2):
        for j in range(2):
            E(f'v_cvt_pk_bf16_f32 v{120 + 2 * T + j}, v{40 + 4 * T + 2 * j}, v{41 + 4 * T + 2 * j}')
    E('v_add_u32 v124, s33, v7')
    E('v_add_u32 v124, 4096, v124')
    a.wait_vm(marks['V'])
    for et in range(2):
        o = f'v[{64 + 4 * et}:{67 + 4 * et}]'
        E(f'v_mfma_f32_16x16x32_bf16 {o}, v[{96 + 4 * et}:{99 + 4 * et}], v[28:31], 0')
    for et in range(2):
        o = f'v[{64 + 4 * et}:{67 + 4 * et}]'
        E(f'v_mfma_f32_16x16x32_bf16 {o}, v[{104 + 4 * et}:{107 + 4 * et}], v[32:35], {o}')
    for et in range(2):
        o = f'v[{40 + 4 * et}:{43 + 4 * et}]'
        E(f'v_mfma_f32_16x16x16_bf16 {o}, v[{120 + 2 * et}:{121 + 2 * et}], v[36:37], 0')
    E(f'global_store_dwordx4 v124, v[120:123], {WS} sc1')
    for k in range(0, 8, 2):
        E(f'v_pk_add_f32 v[{64 + k}:{65 + k}], v[{64 + k}:{65 + k}], v[{40 + k}:{41 + k}]')
    for et in range(2):
        for j in range(2):
            E(f'v_cvt_pk_bf16_f32 v{72 + 2 * et + j}, v{64 + 4 * et + 2 * j}, v{65 + 4 * et + 2 * j}')
    E('ds_write_b128 v20, v[72:75]')
    barrier()
    stamp('s30', 3)
    for ks in range(4):
        E(f'ds_read_b128 v[{96 + 4 * ks}:{99 + 4 * ks}], v21 offset:{XO_REL + ks * 1024}')
    rdwo(1)
    stamp('s30', 4)

    def op_store(i):
        acc = 40 + 4 * (i % 2)
        pk = 124 + 2 * (i % 2)
        for j in range(2):
            E(f'v_cvt_pk_bf16_f32 v{pk + j}, v{acc + 2 * j}, v{acc + 2 * j + 1}')
        for j in range(2):
            E(f'v_and_or_b32 v{pk + j}, v{pk + j}, v10, s31')
        E(f'v_add_u32 v{acc}, {i * 16384}, v11')
        E(f'global_store_dwordx2 v{acc}, v[{pk}:{pk + 1}], {WS}')
    for i in range(8):
        if i + 2 < 8:
            rdwo(i + 2)
        a.wait_ds(seqs['wo', max(i, 1)] if i < 1 else seqs['wo', i])
        st = SETS[i % 3]
        acc = 40 + 4 * (i % 2)
        for ks in range(4):
            E(f'v_mfma_f32_16x16x32_bf16 v[{acc}:{acc + 3}], v[{st + 4 * ks}:{st + 3 + 4 * ks}], v[{96 + 4 * ks}:{99 + 4 * ks}], {f"v[{acc}:{acc + 3}]" if ks else 0}')
        if i > 0:
            op_store(i - 1)
    op_store(7)
    stamp('s30', 5)
    L = poll_begin()
    E('v_add_u32 v124, 4096, v12')
    E('v_add_u32 v125, 8192, v12')
    E('v_add_u32 v126, 12288, v12')
    for i in range(8):
        ar = ('v12', 'v124', 'v125', 'v126')[i // 2]
        E(f'global_load_dwordx2 v[{48 + 2 * i}:{49 + 2 * i}], {ar}, {WS} offset:{(i % 2) * 2048} sc1')
    E('s_waitcnt vmcnt(0)')
    E('v_and_b32 v124, v48, v50')
    E('v_or3_b32 v125, v48, v50, v52')
    for k in (52, 54, 56, 58, 60, 62):
        E(f'v_and_b32 v124, v124, v{k}')
    E('v_or3_b32 v125, v125, v54, v56')
    E('v_or3_b32 v125, v125, v58, v60')
    E('v_or_b32 v125, v125, v62')
    E('v_and_b32 v124, 1, v124')
    E('v_and_b32 v125, 1, v125')
    E('v_cmp_ne_u32 s[40:41], s31, v124')
    E('v_cmp_ne_u32 s[42:43], s31, v125')
    E('s_or_b64 s[40:41], s[40:41], s[42:43]')
    poll_end(L, 2)
    stamp('s30', 6)
    stampval('s30', 10, 's90')
    for i in range(8):
        for j in range(2):
            r = 48 + 2 * i + j
            if i == 0:
                E(f'v_lshlrev_b32 v{24 + 2 * j}, 16, v{r}')
                E(f'v_and_b32 v{25 + 2 * j}, 0xffff0000, v{r}')
            else:
                t = 28 + 2 * j
                E(f'v_lshlrev_b32 v{t}, 16, v{r}')
                E(f'v_and_b32 v{t + 1}, 0xffff0000, v{r}')
                E(f'v_pk_add_f32 v[{24 + 2 * j}:{25 + 2 * j}], v[{24 + 2 * j}:{25 + 2 * j}], v[{t}:{t + 1}]')
    for j in range(4):
        xlane_reduce('v_add_f32', 24 + j, 28 + j)
    E('s_add_u32 s32, s30, 1')
    for j in range(4):
        E(f'v_cvt_pk_bf16_f32 v{24 + j}, v{24 + j}, v{24 + j}')
        E(f'v_and_b32 v{24 + j}, 0xffff0000, v{24 + j}')
    Lo = a.newlabel('Lov')
    E(f's_cmp_gt_u32 s32, {LAG}')
    E(f's_cbranch_scc1 {Lo}')
    for j in range(2):
        E(f'v_lshlrev_b32 v124, 16, v{16 + j}')
        E(f'v_and_b32 v125, 0xffff0000, v{16 + j}')
        E(f'v_cndmask_b32 v{24 + 2 * j}, v{24 + 2 * j}, v124, s[50:51]')
        E(f'v_cndmask_b32 v{25 + 2 * j}, v{25 + 2 * j}, v125, s[50:51]')
    a.flush()
    a.label(Lo)
    for j in range(4):
        E(f'v_or_b32 v{24 + j}, s32, v{24 + j}')
    E('s_mov_b64 exec, 0xffff')
    E(f'global_store_dwordx4 v13, v[24:27], {WS}')
    E('s_mov_b64 exec, -1')
    E(f's_cmp_ge_u32 s32, {NSTEP}')
    E('s_cbranch_scc1 Lchain_done')
    stamp('s30', 7)
    L = poll_begin()
    for i in range(8):
        E(f'global_load_dwordx4 v[{48 + 4 * i}:{51 + 4 * i}], v{14 + i // 4}, {WS} offset:{(i % 4) * 1024} sc1')
    E('s_waitcnt vmcnt(0)')
    E('v_and_b32 v124, v48, v52')
    E('v_or3_b32 v125, v48, v52, v56')
    for k in (56, 60, 64, 68, 72, 76):
        E(f'v_and_b32 v124, v124, v{k}')
    E('v_or3_b32 v125, v125, v60, v64')
    E('v_or3_b32 v125, v125, v68, v72')
    E('v_or_b32 v125, v125, v76')
    E('v_and_b32 v124, 0xffff, v124')
    E('v_and_b32 v125, 0xffff, v125')
    E('v_cmp_ne_u32 s[40:41], s32, v124')
    E('v_cmp_ne_u32 s[42:43], s32, v125')
    E('s_or_b64 s[40:41], s[40:41], s[42:43]')
    poll_end(L, 3)
    stamp('s30', 8)
    stampval('s30', 11, 's90')
    E('s_mov_b32 s23, 0x07060302')
    for i in range(8):
        E(f'v_perm_b32 v{24 + 2 * i}, v{49 + 4 * i}, v{48 + 4 * i}, s23')
        E(f'v_perm_b32 v{25 + 2 * i}, v{51 + 4 * i}, v{50 + 4 * i}, s23')
        E(f'v_xor_b32 v124, {i << 5}, v8')
        E(f'ds_write_b64 v124, v[{24 + 2 * i}:{25 + 2 * i}]')
    E('s_mov_b32 s39, s30')
    E('s_mov_b32 s30, s32')
    a.flush()
    E('s_branch Lchain_step')
    a.label('Lchain_done')
    mem_flag('s30')
    E('s_waitcnt vmcnt(0)')
    E('s_endpgm')


def make_tables(nteams, k1, k2):
    items = []
    for p in range(32):
        items.append((2 * p + k1, 0, p))
        items.append((2 * p + LAG + k2, 1, p))
    items.sort()
    tabs = [[] for _ in range(nteams)]
    for i, (k, l, p) in enumerate(items):
        tabs[i % nteams].append(l * 32 + p)
    return tabs


def table_ptr(label, first_xcc):
    E('s_getpc_b64 s[54:55]')
    a.label('Lpc' + label)
    E(f's_add_u32 s54, s54, {label} - Lpc{label}')
    E('s_addc_u32 s55, s55, 0')
    E(f's_sub_u32 s23, s22, {first_xcc}')
    E(f's_mul_i32 s23, s23, {4 * 64}')
    E('s_add_u32 s54, s54, s23')
    E('s_addc_u32 s55, s55, 0')


def gen_A():
    tabs = make_tables(2, -8, -4)
    a.label('LroleA')
    E(f's_load_dwordx2 s[12:13], s[0:1], {KA["wq"]}')
    E(f's_load_dwordx2 s[14:15], s[0:1], {KA["wk"]}')
    E(f's_load_dwordx2 s[16:17], s[0:1], {KA["wv"]}')
    E('s_waitcnt lgkmcnt(0)')
    lane_consts()
    load_wqkv()
    stamp('s94', 1)
    XN = 0
    frag_bases(XN)
    grid_wait()
    table_ptr('Ltab_A', 1)
    E('s_mov_b32 s30, 0')
    E('s_mul_i32 s53, s21, 24576')
    E('s_lshl_b32 s23, s20, 10')
    E('s_add_u32 s53, s53, s23')
    E(f's_add_u32 s53, s53, {QKV}')
    E('s_lshl_b32 s52, s21, 2')
    E('s_add_u32 s52, s52, s20')
    a.flush()
    a.label('LA_item')
    E('s_lshl_b32 s23, s30, 2')
    E('s_load_dword s31, s[54:55], s23')
    E('s_waitcnt lgkmcnt(0)')
    E('s_cmp_ge_u32 s31, 64')
    E('s_cbranch_scc1 LA_done')
    stamp('s30', 0)
    E('s_and_b32 s32, s31, 31')
    E('s_lshl_b32 s33, s32, 16')
    E('s_lshl_b32 s31, s31, 1')
    E('s_cmp_ge_u32 s31, 64')
    E('s_cbranch_scc1 LA_l2')
    layernorm64(XIN, 's33', XN)
    a.flush()
    E('s_branch LA_ln_done')
    a.label('LA_l2')
    E('s_lshl_b32 s23, s32, 9')
    E(f's_add_u32 s23, s23, {X2_RDY}')
    E('v_lshlrev_b32 v124, 3, v0')
    E('v_add_u32 v124, s23, v124')
    L = poll_begin()
    E(f'global_load_dwordx2 v[24:25], v124, {WS} sc1')
    E('s_waitcnt vmcnt(0)')
    E('v_and_b32 v24, v24, v25')
    E('v_cmp_ne_u32 s[40:41], 1, v24')
    poll_end(L, 4)
    E(f's_add_u32 s33, s33, {X2}')
    layernorm64(WS, 's33', XN)
    a.flush()
    a.label('LA_ln_done')
    barrier()
    stamp('s30', 1)

    def kvflag(sg):
        E(f's_add_u32 s23, s31, {sg}')
        E('s_lshl_b32 s23, s23, 7')
        E('s_add_u32 s23, s23, s52')
        E('s_lshl_b32 s23, s23, 2')
        E('v_mov_b32 v124, s23')
        E('v_mov_b32 v125, 1')
        E(f'global_store_dword v124, v125, {WS} offset:{KV_RDY} sc1')
    seq0 = None
    for sg in range(2):
        def rd(ks):
            for rt in range(2):
                r = 72 + 8 * (ks % 4) + 4 * rt
                E(f'ds_read_b128 v[{r}:{r + 3}], v{3 + ks % 4} offset:{sg * 32768 + rt * 16384 + (ks // 4) * 256}')
        for ks in range(4):
            rd(ks)
        for ks in range(16):
            E(f's_waitcnt lgkmcnt({min(6, 2 * (15 - ks))})')
            for rt in range(2):
                r = 72 + 8 * (ks % 4) + 4 * rt
                mf = f'v[{r}:{r + 3}]'
                for m in range(2):
                    for T in range(2):
                        ar = 24 + 16 * m + 8 * rt + 4 * T
                        acc = f'v[{ar}:{ar + 3}]'
                        E(f'v_mfma_f32_16x16x32_bf16 {acc}, {wfrag(m, T, ks)}, {mf}, {acc if ks else 0}')
                for T in range(2):
                    ar = 56 + 8 * rt + 4 * T
                    acc = f'v[{ar}:{ar + 3}]'
                    E(f'v_mfma_f32_16x16x32_bf16 {acc}, {mf}, {wfrag(2, T, ks)}, {acc if ks else 0}')
            if ks + 4 < 16:
                rd(ks + 4)
            if sg == 1 and ks == 7:
                a.wait_vm(seq0)
                kvflag(0)
        E(f's_add_u32 s23, s31, {sg}')
        E(f's_mul_i32 s23, s23, {32 * 24576}')
        E('s_add_u32 s23, s23, s53')
        E('v_add_u32 v22, s23, v7')
        for m in range(2):
            for rt in range(2):
                d = 104 + 8 * m + 4 * rt
                for T in range(2):
                    for j in range(2):
                        ar = 24 + 16 * m + 8 * rt + 4 * T + 2 * j
                        E(f'v_cvt_pk_bf16_f32 v{d + 2 * T + j}, v{ar}, v{ar + 1}')
                E(f'v_add_u32 v23, {m * 8192 + rt * 4096}, v22')
                E(f'global_store_dwordx4 v23, v[{d}:{d + 3}], {WS} sc1')
        E('s_lshl_b32 s24, s20, 10')
        E('v_add_u32 v22, s24, v22')
        E('v_add_u32 v22, 16384, v22')
        for T in range(2):
            d = 16 + 4 * T if False else 120 - 0
            d = (120, 8)[T]
            for rt in range(2):
                for j in range(2):
                    ar = 56 + 8 * rt + 4 * T + 2 * j
                    E(f'v_cvt_pk_bf16_f32 v{d + 2 * rt + j}, v{ar}, v{ar + 1}')
            E(f'global_store_dwordx4 v22, v[{d}:{d + 3}], {WS} offset:{T * 1024} sc1')
        seq0 = a.nvm
    stamp('s30', 2)
    E('s_waitcnt vmcnt(0)')
    kvflag(1)
    stamp('s30', 3)
    E('s_add_u32 s30, s30, 1')
    E('s_barrier')
    a.flush()
    E('s_branch LA_item')
    a.label('LA_done')
    E('s_waitcnt vmcnt(0)')
    E('s_endpgm')
    return tabs


def team_consts():
    E('s_lshl_b32 s23, s56, 21')
    E(f's_add_u32 s23, s23, {BPART}')
    E('s_lshl_b32 s24, s20, 19')
    E('s_add_u32 s24, s24, s23')
    E('s_lshl_b32 s25, s21, 11')
    E('s_add_u32 s24, s24, s25')
    E('v_add_u32 v11, s24, v7')
    E('s_lshl_b32 s24, s21, 16')
    E('s_add_u32 s24, s24, s23')
    E('s_lshr_b32 s25, s20, 1')
    E('s_lshl_b32 s25, s25, 10')
    E('s_add_u32 s24, s24, s25')
    E('s_and_b32 s25, s20, 1')
    E('s_lshl_b32 s25, s25, 9')
    E('s_add_u32 s24, s24, s25')
    E('v_lshrrev_b32 v24, 5, v0')
    E('v_and_b32 v25, 31, v0')
    E('v_lshlrev_b32 v25, 4, v25')
    E('v_lshl_add_u32 v25, v24, 11, v25')
    E('v_add_u32 v12, s24, v25')
    E('s_lshr_b32 s25, s20, 1')
    E('s_lshl_b32 s25, s25, 5')
    E('v_lshl_add_u32 v26, v24, 4, v1')
    E('v_add_u32 v26, s25, v26')
    E('v_lshlrev_b32 v26, 10, v26')
    E('v_and_b32 v27, 1, v2')
    E('s_and_b32 s25, s20, 1')
    E('s_lshl_b32 s25, s25, 4')
    E('s_lshl_b32 s24, s21, 5')
    E('s_add_u32 s25, s25, s24')
    E('v_lshl_add_u32 v26, v27, 3, v26')
    E('v_add_u32 v13, s25, v26')
    E('v_cmp_eq_u32 s[58:59], 1, v24')
    E('s_lshl_b32 s23, s56, 7')
    E(f's_add_u32 s57, s23, {PF}')
    E('s_lshl_b32 s23, s56, 9')
    E(f's_add_u32 s60, s23, {DONE}')


def done_pre():
    E('v_lshlrev_b32 v124, 3, v0')
    E('v_add_u32 v124, s60, v124')
    E(f'global_load_dwordx2 v[16:17], v124, {WS} sc1')


def wait_done(code):
    Lok = a.newlabel('Ldok')
    E('s_sub_u32 s23, s34, 1')
    E('v_min_u32 v16, v16, v17')
    E('v_cmp_gt_u32 s[40:41], s23, v16')
    E('s_cmp_eq_u64 s[40:41], 0')
    E(f's_cbranch_scc1 {Lok}')
    E('v_lshlrev_b32 v124, 3, v0')
    E('v_add_u32 v124, s60, v124')
    L = poll_begin()
    E(f'global_load_dwordx2 v[126:127], v124, {WS} sc1')
    E('s_waitcnt vmcnt(0)')
    E('v_min_u32 v126, v126, v127')
    E('v_cmp_gt_u32 s[40:41], s23, v126')
    poll_end(L, code)
    a.flush()
    a.label(Lok)


def publish_and_reduce(nprod, code, producer_mask_label=None):
    E('s_waitcnt vmcnt(0)')
    E('s_barrier')
    E('s_lshl_b32 s23, s21, 2')
    E('s_add_u32 s23, s23, s57')
    E('v_mov_b32 v124, s23')
    E('v_mov_b32 v125, s34')
    E(f'global_store_dword v124, v125, {WS}')
    if producer_mask_label:
        a.flush()
        a.label(producer_mask_label)
    E('v_and_b32 v124, 31, v0')
    E(f'v_min_u32 v124, {nprod - 1}, v124')
    E('v_lshlrev_b32 v124, 2, v124')
    E('v_add_u32 v124, s57, v124')
    L = poll_begin()
    E(f'global_load_dword v125, v124, {WS} sc1')
    E('s_waitcnt vmcnt(0)')
    E('v_cmp_gt_u32 s[40:41], s34, v125')
    poll_end(L, code)
    nl = nprod // 2
    sq = []
    for i in range(nl):
        E(f'v_add_u32 v124, {i * 4096}, v12')
        E(f'global_load_dwordx4 v[{40 + 4 * i}:{43 + 4 * i}], v124, {WS} sc1')
        sq.append(a.nvm)
    for i in range(nl):
        a.wait_vm(sq[i])
        for j in range(4):
            r = 40 + 4 * i + j
            if i == 0:
                E(f'v_lshlrev_b32 v{24 + 2 * j}, 16, v{r}')
                E(f'v_and_b32 v{25 + 2 * j}, 0xffff0000, v{r}')
            else:
                E(f'v_lshlrev_b32 v124, 16, v{r}')
                E(f'v_and_b32 v125, 0xffff0000, v{r}')
                E(f'v_pk_add_f32 v[{24 + 2 * j}:{25 + 2 * j}], v[{24 + 2 * j}:{25 + 2 * j}], v[124:125]')
    E('s_lshl_b32 s23, s52, 2')
    E('s_add_u32 s23, s23, s60')
    E('v_mov_b32 v124, s23')
    E('v_mov_b32 v125, s34')
    E(f'global_store_dword v124, v125, {WS}')
    for k in range(8):
        E(f'v_mov_b32 v{32 + k}, v{24 + k}')
        E(f'v_permlane32_swap_b32 v{24 + k}, v{32 + k}')
        E(f'v_add_f32 v{24 + k}, v{24 + k}, v{32 + k}')
    for k in range(4):
        E(f'v_cndmask_b32 v{24 + k}, v{24 + k}, v{28 + k}, s[58:59]')


def partial_store(i, accs):
    for rtp in range(2):
        for h2 in range(2):
            ar = accs[2 * rtp + h2]
            for j in range(2):
                E(f'v_cvt_pk_bf16_f32 v{104 + 4 * rtp + 2 * h2 + j}, v{ar + 2 * j}, v{ar + 2 * j + 1}')
    E(f'v_add_u32 v124, {i * 65536}, v11')
    E(f'global_store_dwordx4 v124, v[104:107], {WS}')
    E(f'global_store_dwordx4 v124, v[108:111], {WS} offset:1024')


def gen_B():
    a.label('LroleB')
    E(f's_load_dwordx2 s[18:19], s[0:1], {KA["wo"]}')
    E('s_waitcnt lgkmcnt(0)')
    lane_consts()
    STR = 1040
    E('s_lshl_b32 s23, s21, 17')
    E('s_lshl_b32 s24, s20, 15')
    E('s_add_u32 s23, s23, s24')
    E('v_add_u32 v24, s23, v7')
    E(f's_mul_i32 s24, s20, {32 * STR}')
    E('v_add_u32 v25, s24, v7')
    for b in range(4):
        E(f'v_add_u32 v26, {b * 8192}, v24')
        E(f'v_add_u32 v27, {b * 8192 + 4096}, v24')
        for i in range(8):
            E(f'global_load_dwordx4 v[{32 + 4 * i}:{35 + 4 * i}], v{26 + i // 4}, s[18:19] offset:{(i % 4) * 1024}')
        for i in range(8):
            E(f's_waitcnt vmcnt({7 - i})')
            E(f'ds_write_b128 v25, v[{32 + 4 * i}:{35 + 4 * i}] offset:{(b * 8 + i) * STR}')
    barrier()
    E('v_lshrrev_b32 v26, 2, v1')
    E('v_lshl_add_u32 v26, v2, 2, v26')
    E(f'v_mul_u32_u24 v26, {STR}, v26')
    E('v_and_b32 v27, 3, v1')
    E('v_lshl_add_u32 v26, v27, 3, v26')
    E('s_lshl_b32 s24, s20, 8')
    E('v_add_u32 v26, s24, v26')
    E(f'v_add_u32 v27, {64 * STR}, v26')
    for ni in range(8):
        for ks in range(4):
            r = 128 + (ni * 4 + ks) * 4
            off = (ks % 2) * 32 * STR + ni * 32
            E(f'ds_read_b64_tr_b16 v[{r}:{r + 1}], v{26 + ks // 2} offset:{off}')
            E(f'ds_read_b64_tr_b16 v[{r + 2}:{r + 3}], v{26 + ks // 2} offset:{off + 16 * STR}')
    barrier()
    E('s_sub_u32 s61, s22, 3')
    E('s_mov_b32 s56, s61')
    E('s_lshl_b32 s52, s21, 2')
    E('s_add_u32 s52, s52, s20')
    team_consts()
    E('s_and_b32 s23, s20, 1')
    E('s_lshl_b32 s23, s23, 4')
    E('v_add_u32 v14, s23, v1')
    E('v_lshlrev_b32 v24, 2, v2')
    E('v_sub_u32 v14, v14, v24')
    E('v_lshrrev_b32 v24, 1, v2')
    E('v_cmp_eq_u32 s[46:47], s61, v24')
    E('s_lshl_b32 s23, s20, 12')
    E('v_add_u32 v20, s23, v7')
    grid_wait()
    E('s_mov_b32 s34, 1')
    a.flush()
    a.label('LB_item')
    stamp('s34', 0)
    E('s_sub_u32 s35, s34, 1')
    E('s_lshl_b32 s36, s35, 1')
    E('s_lshr_b32 s23, s20, 1')
    E('s_add_u32 s36, s36, s23')
    E(f's_mul_i32 s37, s61, {LAG}')
    E('s_add_u32 s37, s37, s36')
    E('s_lshl_b32 s38, s61, 6')
    E('s_add_u32 s38, s38, s36')
    E('s_lshl_b32 s23, s38, 9')
    E('s_lshl_b32 s24, s21, 4')
    E('s_add_u32 s23, s23, s24')
    E('s_lshl_b32 s25, s37, 9')
    E('s_add_u32 s25, s25, s24')
    E(f's_add_u32 s25, s25, {MEM_RDY}')
    E('v_mov_b32 v124, s23')
    E('v_mov_b32 v125, s25')
    L = poll_begin()
    E(f'global_load_dwordx4 v[24:27], v124, {WS} offset:{KV_RDY} sc1')
    E(f'global_load_dwordx4 v[28:31], v125, {WS} sc1')
    E('s_waitcnt vmcnt(0)')
    E('v_and_b32 v24, v24, v25')
    E('v_and_b32 v26, v26, v27')
    E('v_and_b32 v28, v28, v29')
    E('v_and_b32 v30, v30, v31')
    E('v_and_b32 v24, v24, v26')
    E('v_and_b32 v28, v28, v30')
    E('v_and_b32 v24, v24, v28')
    E('v_cmp_ne_u32 s[40:41], 1, v24')
    poll_end(L, 5)
    stamp('s34', 1)
    done_pre()
    E('s_lshl_b32 s23, s35, 16')
    E('v_add_u32 v124, s23, v13')
    Lr = a.newlabel('Lres')
    Lr2 = a.newlabel('Lres')
    E('s_cmp_eq_u32 s61, 0')
    E(f's_cbranch_scc0 {Lr}')
    E(f'global_load_dwordx2 v[22:23], v124, {XIN} sc1')
    E(f's_branch {Lr2}')
    a.label(Lr)
    E(f'v_add_u32 v125, {X2}, v124')
    E(f'global_load_dwordx2 v[22:23], v125, {WS} sc1')
    a.label(Lr2)
    E(f's_mul_i32 s23, s38, {32 * 24576}')
    E('s_mul_i32 s24, s21, 24576')
    E('s_add_u32 s23, s23, s24')
    E(f's_add_u32 s23, s23, {QKV}')
    E('v_add_u32 v124, s23, v7')
    E('s_and_b32 s24, s20, 1')
    E('s_lshl_b32 s24, s24, 12')
    E('v_add_u32 v125, s24, v124')
    for ks in range(4):
        E(f'global_load_dwordx4 v[{24 + 4 * ks}:{27 + 4 * ks}], v125, {WS} offset:{ks * 1024} sc1')
    for kt in range(2):
        E(f'v_add_u32 v125, {8192 + kt * 4096}, v124')
        for ks in range(4):
            r = 40 + 16 * kt + 4 * ks
            E(f'global_load_dwordx4 v[{r}:{r + 3}], v125, {WS} offset:{ks * 1024} sc1')
    E('s_lshl_b32 s23, s37, 5')
    E('s_add_u32 s23, s23, s21')
    E('s_lshl_b32 s23, s23, 13')
    E(f's_add_u32 s23, s23, {MEMKV}')
    E('v_add_u32 v126, s23, v7')
    for ks in range(4):
        E(f'global_load_dwordx4 v[{72 + 4 * ks}:{75 + 4 * ks}], v126, {WS} offset:{ks * 1024} sc1')
    for hb in range(2):
        E(f'v_add_u32 v125, {16384 + hb * 4096}, v124')
        for e in range(4):
            r = 16 * hb + 4 * e
            E(f'global_load_dwordx4 a[{r}:{r + 3}], v125, {WS} offset:{e * 1024} sc1')
    E('v_add_u32 v126, 4096, v126')
    for ks in range(4):
        E(f'global_load_dwordx4 a[{32 + 4 * ks}:{35 + 4 * ks}], v126, {WS} offset:{ks * 1024} sc1')
    E('s_waitcnt vmcnt(12)')
    for ks in range(4):
        q = f'v[{24 + 4 * ks}:{27 + 4 * ks}]'
        for kt in range(2):
            r = 40 + 16 * kt + 4 * ks
            d = 88 + 4 * kt
            E(f'v_mfma_f32_16x16x32_bf16 v[{d}:{d + 3}], v[{r}:{r + 3}], {q}, {f"v[{d}:{d + 3}]" if ks else 0}')
        E(f'v_mfma_f32_16x16x32_bf16 v[96:99], v[{72 + 4 * ks}:{75 + 4 * ks}], {q}, {"v[96:99]" if ks else 0}')
    E('v_mov_b32 v124, 0xf149f2ca')
    for kt in range(2):
        for r in range(4):
            E(f'v_cmp_le_i32 vcc, {16 * kt + r}, v14')
            E(f'v_cndmask_b32 v{88 + 4 * kt + r}, v124, v{88 + 4 * kt + r}, vcc')
    for k in range(4):
        E(f'v_cndmask_b32 v{96 + k}, v124, v{96 + k}, s[46:47]')
    softmax12(88, 124)
    for j in range(4):
        E(f'v_cvt_pk_bf16_f32 v{100 + j}, v{88 + 2 * j}, v{89 + 2 * j}')
    for j in range(2):
        E(f'v_cvt_pk_bf16_f32 v{104 + j}, v{96 + 2 * j}, v{97 + 2 * j}')
    E('s_waitcnt vmcnt(0)')
    for et in range(8):
        o = f'v[{24 + 4 * et}:{27 + 4 * et}]'
        E(f'v_mfma_f32_16x16x32_bf16 {o}, a[{4 * et}:{4 * et + 3}], v[100:103], 0')
    for et in range(8):
        o = f'v[{24 + 4 * et}:{27 + 4 * et}]'
        mr = 32 + 4 * (et // 2) + 2 * (et % 2)
        E(f'v_mfma_f32_16x16x16_bf16 {o}, a[{mr}:{mr + 1}], v[104:105], {o}')
    for ks in range(4):
        for T in range(2):
            for j in range(2):
                ar = 24 + 4 * (2 * ks + T) + 2 * j
                E(f'v_cvt_pk_bf16_f32 v{56 + 4 * ks + 2 * T + j}, v{ar}, v{ar + 1}')
        E(f'ds_write_b128 v20, v[{56 + 4 * ks}:{59 + 4 * ks}] offset:{ks * 1024}')
    barrier()
    for rt in range(4):
        for ks in range(4):
            r = 24 + 16 * rt + 4 * ks
            E(f'ds_read_b128 v[{r}:{r + 3}], v7 offset:{rt * 4096 + ks * 1024}')
    stamp('s34', 2)
    wait_done(6)
    stamp('s34', 3)
    E('s_waitcnt lgkmcnt(0)')
    for i in range(8):
        accs = [88 + 4 * rt for rt in range(4)]
        for ks in range(4):
            wr = 128 + (i * 4 + ks) * 4
            for rt in range(4):
                r = 24 + 16 * rt + 4 * ks
                ac = f'v[{accs[rt]}:{accs[rt] + 3}]'
                E(f'v_mfma_f32_16x16x32_bf16 {ac}, v[{wr}:{wr + 3}], v[{r}:{r + 3}], {ac if ks else 0}')
        partial_store(i, accs)
    stamp('s34', 4)
    publish_and_reduce(32, 7)
    stamp('s34', 5)
    E('s_lshl_b32 s23, s35, 16')
    E('v_add_u32 v124, s23, v13')
    final_store(X1, 's61', X1_RDY)
    stamp('s34', 6)
    E('s_add_u32 s34, s34, 1')
    E('s_cmp_le_u32 s34, 32')
    a.flush()
    E('s_cbranch_scc1 LB_item')
    E('s_waitcnt vmcnt(0)')
    E('s_endpgm')


def add_resid():
    for j in range(2):
        E(f'v_cvt_pk_bf16_f32 v{34 + j}, v{24 + 2 * j}, v{25 + 2 * j}')
    for j in range(2):
        E(f'v_lshlrev_b32 v{24 + 2 * j}, 16, v{34 + j}')
        E(f'v_and_b32 v{25 + 2 * j}, 0xffff0000, v{34 + j}')
        E(f'v_lshlrev_b32 v{28 + 2 * j}, 16, v{22 + j}')
        E(f'v_and_b32 v{29 + 2 * j}, 0xffff0000, v{22 + j}')
    for k in range(4):
        E(f'v_add_f32 v{24 + k}, v{24 + k}, v{28 + k}')
    for j in range(2):
        E(f'v_cvt_pk_bf16_f32 v{32 + j}, v{24 + 2 * j}, v{25 + 2 * j}')


def final_store(dst, lreg, rdy):
    add_resid()
    E(f's_lshl_b32 s23, {lreg}, 21')
    E(f's_add_u32 s23, s23, {dst}')
    E('v_add_u32 v125, s23, v124')
    E(f'global_store_dwordx2 v125, v[32:33], {WS} sc1')
    E('s_waitcnt vmcnt(0)')
    E(f's_lshl_b32 s23, {lreg}, 5')
    E('s_add_u32 s23, s23, s35')
    E('s_lshl_b32 s23, s23, 7')
    E('s_add_u32 s23, s23, s52')
    E('s_lshl_b32 s23, s23, 2')
    E(f's_add_u32 s23, s23, {rdy}')
    E('v_mov_b32 v124, s23')
    E('v_mov_b32 v125, 1')
    E(f'global_store_dword v124, v125, {WS} sc1')


def gen_F():
    a.label('LroleF')
    E(f's_load_dwordx2 s[12:13], s[0:1], {KA["wg"]}')
    E(f's_load_dwordx2 s[14:15], s[0:1], {KA["wu"]}')
    E(f's_load_dwordx2 s[16:17], s[0:1], {KA["wd"]}')
    E('s_waitcnt lgkmcnt(0)')
    lane_consts()
    E('s_sub_u32 s56, s22, 3')
    E('s_lshl_b32 s52, s21, 2')
    E('s_add_u32 s52, s52, s20')
    E('s_cmp_ge_u32 s21, 28')
    E('s_cbranch_scc1 LF_wdone')
    STR = 144
    UPO = 512 * STR
    E('v_lshrrev_b32 v24, 3, v0')
    E('s_lshl_b32 s23, s20, 7')
    E('v_add_u32 v24, s23, v24')
    E('v_and_b32 v25, 7, v0')
    E('s_movk_i32 s23, 3584')
    E('v_mul_lo_u32 v26, v24, s23')
    E('v_lshl_add_u32 v26, v25, 4, v26')
    E('s_lshl_b32 s23, s21, 7')
    E('v_add_u32 v26, s23, v26')
    E(f'v_mul_u32_u24 v27, {STR}, v24')
    E('v_lshl_add_u32 v27, v25, 4, v27')
    for mi, ptr in enumerate(('s[12:13]', 's[14:15]')):
        for b in range(2):
            for i in range(8):
                ii = b * 8 + i
                E(f'v_add_u32 v28, {ii * 8 * 3584}, v26')
                E(f'global_load_dwordx4 v[{32 + 4 * i}:{35 + 4 * i}], v28, {ptr}')
            for i in range(8):
                ii = b * 8 + i
                E(f's_waitcnt vmcnt({7 - i})')
                off = ii * 8 * STR
                if mi == 1:
                    E(f'v_add_u32 v28, {UPO}, v27')
                    E(f'ds_write_b128 v28, v[{32 + 4 * i}:{35 + 4 * i}] offset:{off}')
                else:
                    E(f'ds_write_b128 v27, v[{32 + 4 * i}:{35 + 4 * i}] offset:{off}')
    barrier()
    E('v_lshrrev_b32 v26, 2, v1')
    E('v_lshl_add_u32 v26, v2, 3, v26')
    E(f'v_mul_u32_u24 v26, {STR}, v26')
    E('v_and_b32 v27, 3, v1')
    E('v_lshl_add_u32 v26, v27, 3, v26')
    E('s_lshl_b32 s24, s20, 5')
    E('v_add_u32 v26, s24, v26')
    E(f'v_add_u32 v27, {8 * 32 * STR}, v26')
    E(f'v_add_u32 v28, {UPO}, v26')
    E(f'v_add_u32 v29, {UPO + 8 * 32 * STR}, v26')
    for mi in range(2):
        for ks in range(16):
            r = 64 * mi + 4 * ks
            base = 26 + 2 * mi + ks // 8
            off = (ks % 8) * 32 * STR
            E(f'ds_read_b64_tr_b16 a[{r}:{r + 1}], v{base} offset:{off}')
            E(f'ds_read_b64_tr_b16 a[{r + 2}:{r + 3}], v{base} offset:{off + 4 * STR}')
    barrier()
    STR = 1040
    E('s_lshl_b32 s23, s21, 16')
    E('s_lshl_b32 s24, s20, 14')
    E('s_add_u32 s23, s23, s24')
    E('v_add_u32 v24, s23, v7')
    E(f's_mul_i32 s24, s20, {16 * STR}')
    E('v_add_u32 v25, s24, v7')
    for b in range(2):
        E(f'v_add_u32 v26, {b * 8192}, v24')
        E(f'v_add_u32 v27, {b * 8192 + 4096}, v24')
        for i in range(8):
            E(f'global_load_dwordx4 v[{32 + 4 * i}:{35 + 4 * i}], v{26 + i // 4}, s[16:17] offset:{(i % 4) * 1024}')
        for i in range(8):
            E(f's_waitcnt vmcnt({7 - i})')
            E(f'ds_write_b128 v25, v[{32 + 4 * i}:{35 + 4 * i}] offset:{(b * 8 + i) * STR}')
    barrier()
    E('v_lshrrev_b32 v26, 2, v1')
    E('v_lshl_add_u32 v26, v2, 2, v26')
    E(f'v_mul_u32_u24 v26, {STR}, v26')
    E('v_and_b32 v27, 3, v1')
    E('v_lshl_add_u32 v26, v27, 3, v26')
    E('s_lshl_b32 s24, s20, 8')
    E('v_add_u32 v26, s24, v26')
    for ni in range(8):
        for k2 in range(2):
            r = 128 + (ni * 2 + k2) * 4
            off = k2 * 32 * STR + ni * 32
            E(f'ds_read_b64_tr_b16 v[{r}:{r + 1}], v26 offset:{off}')
            E(f'ds_read_b64_tr_b16 v[{r + 2}:{r + 3}], v26 offset:{off + 16 * STR}')
    E('s_waitcnt lgkmcnt(0)')
    a.label('LF_wdone')
    E('s_barrier')
    team_consts()
    XN = 0
    XH = 65536
    frag_bases(XN)
    E('v_lshlrev_b32 v21, 3, v0')
    E(f'v_add_u32 v21, {XH}, v21')
    E('s_lshl_b32 s23, s20, 11')
    E('v_add_u32 v20, s23, v21')
    E('s_mov_b32 s34, 1')
    grid_wait()
    table_ptr('Ltab_F', 5)
    a.flush()
    a.label('LF_item')
    E('s_lshl_b32 s23, s34, 2')
    E('s_sub_u32 s23, s23, 4')
    E('s_load_dword s31, s[54:55], s23')
    E('s_waitcnt lgkmcnt(0)')
    E('s_cmp_ge_u32 s31, 64')
    E('s_cbranch_scc1 LF_done')
    E('s_and_b32 s35, s31, 31')
    E('s_lshr_b32 s61, s31, 5')
    stamp('s34', 0)
    E('s_lshl_b32 s23, s61, 5')
    E('s_add_u32 s23, s23, s35')
    E('s_lshl_b32 s23, s23, 9')
    E(f's_add_u32 s23, s23, {X1_RDY}')
    E('v_lshlrev_b32 v124, 3, v0')
    E('v_add_u32 v124, s23, v124')
    L = poll_begin()
    E(f'global_load_dwordx2 v[24:25], v124, {WS} sc1')
    E('s_waitcnt vmcnt(0)')
    E('v_and_b32 v24, v24, v25')
    E('v_cmp_ne_u32 s[40:41], 1, v24')
    poll_end(L, 8)
    stamp('s34', 1)
    E('s_lshl_b32 s33, s61, 21')
    E('s_lshl_b32 s23, s35, 16')
    E('s_add_u32 s33, s33, s23')
    E(f's_add_u32 s33, s33, {X1}')
    E('v_add_u32 v125, s33, v13')
    E(f'global_load_dwordx2 v[22:23], v125, {WS} sc1')
    E('s_cmp_ge_u32 s21, 28')
    E('s_cbranch_scc1 LF_cons')
    done_pre()
    layernorm64(WS, 's33', XN)
    barrier()
    stamp('s34', 2)

    def rd(ks):
        for rt in range(4):
            r = 56 + 16 * (ks % 2) + 4 * rt
            E(f'ds_read_b128 v[{r}:{r + 3}], v{3 + ks % 4} offset:{rt * 16384 + (ks // 4) * 256}')
    rd(0)
    rd(1)
    for ks in range(16):
        E(f's_waitcnt lgkmcnt({4 if ks < 15 else 0})')
        for rt in range(4):
            r = 56 + 16 * (ks % 2) + 4 * rt
            for mi in range(2):
                ar = 24 + 16 * mi + 4 * rt
                acc = f'v[{ar}:{ar + 3}]'
                E(f'v_mfma_f32_16x16x32_bf16 {acc}, a[{64 * mi + 4 * ks}:{64 * mi + 4 * ks + 3}], v[{r}:{r + 3}], {acc if ks else 0}')
        if ks + 2 < 16:
            rd(ks + 2)
    E('s_mov_b32 s23, 0x3d372713')
    E('s_mov_b32 s24, 0xc0135761')
    for k in range(0, 16, 2):
        E(f'v_cvt_pk_bf16_f32 v56, v{24 + k}, v{25 + k}')
        E(f'v_cvt_pk_bf16_f32 v57, v{40 + k}, v{41 + k}')
        E(f'v_lshlrev_b32 v{24 + k}, 16, v56')
        E(f'v_and_b32 v{25 + k}, 0xffff0000, v56')
        E(f'v_lshlrev_b32 v{40 + k}, 16, v57')
        E(f'v_and_b32 v{41 + k}, 0xffff0000, v57')
    for k in range(16):
        g = 24 + k
        t = 56 + k
        E(f'v_mul_f32 v{t}, v{g}, v{g}')
        E(f'v_mul_f32 v{t}, s23, v{t}')
        E(f'v_fma_f32 v{t}, v{t}, v{g}, v{g}')
        E(f'v_mul_f32 v{t}, s24, v{t}')
    for k in range(16):
        E(f'v_exp_f32 v{56 + k}, v{56 + k}')
    for k in range(16):
        E(f'v_add_f32 v{56 + k}, 1.0, v{56 + k}')
    for k in range(16):
        E(f'v_rcp_f32 v{56 + k}, v{56 + k}')
    for k in range(16):
        E(f'v_mul_f32 v{24 + k}, v{24 + k}, v{56 + k}')
    for k in range(0, 16, 2):
        E(f'v_cvt_pk_bf16_f32 v56, v{24 + k}, v{25 + k}')
        E(f'v_lshlrev_b32 v{24 + k}, 16, v56')
        E(f'v_and_b32 v{25 + k}, 0xffff0000, v56')
    for k in range(16):
        E(f'v_mul_f32 v{24 + k}, v{24 + k}, v{40 + k}')
    for rt in range(4):
        for j in range(2):
            E(f'v_cvt_pk_bf16_f32 v{56 + 2 * rt + j}, v{24 + 4 * rt + 2 * j}, v{25 + 4 * rt + 2 * j}')
        E(f'ds_write_b64 v20, v[{56 + 2 * rt}:{57 + 2 * rt}] offset:{rt * 512}')
    barrier()
    for rt in range(4):
        for k2 in range(2):
            r = 24 + 8 * rt + 4 * k2
            E(f'ds_read_b64 v[{r}:{r + 1}], v21 offset:{(2 * k2) * 2048 + rt * 512}')
            E(f'ds_read_b64 v[{r + 2}:{r + 3}], v21 offset:{(2 * k2 + 1) * 2048 + rt * 512}')
    stamp('s34', 3)
    wait_done(9)
    E('s_waitcnt lgkmcnt(0)')
    for i in range(8):
        accs = [88 + 4 * rt for rt in range(4)]
        for k2 in range(2):
            wr = 128 + (i * 2 + k2) * 4
            for rt in range(4):
                r = 24 + 8 * rt + 4 * k2
                ac = f'v[{accs[rt]}:{accs[rt] + 3}]'
                E(f'v_mfma_f32_16x16x32_bf16 {ac}, v[{wr}:{wr + 3}], v[{r}:{r + 3}], {ac if k2 else 0}')
        partial_store(i, accs)
    stamp('s34', 4)
    publish_and_reduce(28, 10, 'LF_cons')
    stamp('s34', 5)
    E('s_lshl_b32 s23, s35, 16')
    E('v_add_u32 v124, s23, v13')
    add_resid()
    Lo = a.newlabel('Lfo')
    Lo2 = a.newlabel('Lfo')
    E('s_cmp_eq_u32 s61, 0')
    E(f's_cbranch_scc0 {Lo}')
    E(f'v_add_u32 v125, {X2}, v124')
    E(f'global_store_dwordx2 v125, v[32:33], {WS} sc1')
    E('s_waitcnt vmcnt(0)')
    E('s_lshl_b32 s23, s35, 7')
    E('s_add_u32 s23, s23, s52')
    E('s_lshl_b32 s23, s23, 2')
    E(f's_add_u32 s23, s23, {X2_RDY}')
    E('v_mov_b32 v124, s23')
    E('v_mov_b32 v125, 1')
    E(f'global_store_dword v124, v125, {WS} sc1')
    E(f's_branch {Lo2}')
    a.label(Lo)
    E(f'global_store_dwordx2 v124, v[32:33], {OUT}')
    a.label(Lo2)
    E('s_add_u32 s34, s34, 1')
    a.flush()
    E('s_branch LF_item')
    a.label('LF_done')
    stamp('s94', 5)
    E('s_waitcnt vmcnt(0)')
    E('s_endpgm')


def gen_mega():
    a.lines.append('.globl mega_kernel\n.p2align 8\n.type mega_kernel,@function\nmega_kernel:')
    E('s_cmp_ge_u32 s2, 256')
    E('s_cbranch_scc1 Lmega_exit')
    E(f's_load_dwordx2 s[4:5], s[0:1], {KA["ws"]}')
    E(f's_load_dwordx2 s[6:7], s[0:1], {KA["x"]}')
    E(f's_load_dwordx2 s[8:9], s[0:1], {KA["out"]}')
    E(f's_load_dwordx2 s[10:11], s[0:1], {KA["dbg"]}')
    E('v_lshrrev_b32 v1, 6, v0')
    E('v_readfirstlane_b32 s20, v1')
    E('v_and_b32 v0, 63, v0')
    E('s_getreg_b32 s22, hwreg(HW_REG_XCC_ID)')
    E('s_and_b32 s22, s22, 7')
    E('s_waitcnt lgkmcnt(0)')
    E('s_cmp_lg_u32 s20, 0')
    E('s_cbranch_scc1 Lticket_skip')
    E('s_mov_b64 exec, 1')
    E('s_lshl_b32 s23, s22, 2')
    E('v_mov_b32 v2, s23')
    E('v_mov_b32 v3, 1')
    E(f'global_atomic_add v4, v2, v3, {DBG} sc0 sc1')
    E('v_mov_b32 v5, 0')
    E('s_waitcnt vmcnt(0)')
    E('ds_write_b32 v5, v4')
    E('s_mov_b64 exec, -1')
    a.label('Lticket_skip')
    barrier()
    E('v_mov_b32 v5, 0')
    E('ds_read_b32 v4, v5')
    E('s_waitcnt lgkmcnt(0)')
    E('v_readfirstlane_b32 s21, v4')
    E('s_barrier')
    E('s_cmp_ge_u32 s21, 32')
    E('s_cbranch_scc1 Lmega_exit')
    E('s_mov_b32 s94, 100')
    lane_consts()
    ZSH = ZERO_END // 256
    E(f's_mul_i32 s23, s2, {ZSH}')
    E('s_lshl_b32 s24, s20, 10')
    E('s_add_u32 s23, s23, s24')
    E('v_add_u32 v24, s23, v7')
    for k in range(4):
        E(f'v_mov_b32 v{28 + k}, 0')
    E(f'global_store_dwordx4 v24, v[28:31], {WS} sc1')
    E('s_cmp_lg_u32 s20, 0')
    E('s_cbranch_scc1 Lz_skip')
    E('v_add_u32 v24, 4096, v24')
    E(f'global_store_dwordx4 v24, v[28:31], {WS} sc1')
    a.label('Lz_skip')
    E('s_waitcnt vmcnt(0)')
    E('s_barrier')
    E('s_cmp_lg_u32 s20, 0')
    E('s_cbranch_scc1 Lz_skip2')
    E('s_mov_b64 exec, 1')
    E('v_mov_b32 v24, 32')
    E('v_mov_b32 v25, 1')
    E(f'global_atomic_add v24, v25, {DBG} sc1')
    E('s_mov_b64 exec, -1')
    a.label('Lz_skip2')
    stamp('s94', 0)
    E('s_cmp_eq_u32 s22, 0')
    E('s_cbranch_scc1 Lchain')
    E('s_cmp_le_u32 s22, 2')
    E('s_cbranch_scc1 LroleA')
    E('s_cmp_le_u32 s22, 4')
    E('s_cbranch_scc1 LroleB')
    E('s_branch LroleF')
    a.label('Lmega_exit')
    E('s_endpgm')
    gen_chain()
    tabs = gen_A()
    gen_B()
    gen_F()
    a.lines.append('.p2align 6')
    a.lines.append('Ltab_A:')
    for t in tabs:
        t = t + [255] * (64 - len(t))
        a.lines.append('.long ' + ', '.join(str(x) for x in t))
    a.lines.append('Ltab_F:')
    for t in make_tables(3, 0, 0):
        t = t + [255] * (64 - len(t))
        a.lines.append('.long ' + ', '.join(str(x) for x in t))


HEADER = open('interleave_layers__memory_aug_recurrent_mem_tr__geglu_ffn__prompt.s.ref').read().split('; Override launch')[0]

nwg_init = ZERO_END // 4096
out = HEADER
out += '; @launch kernel=mega_kernel grid=(256,1,1) block=(256,1,1) lds=163840\n'
out += '.amdgcn_target "amdgcn-amd-amdhsa--gfx950"\n.text\n'
gen_mega()
out += a.text()
out += '''.section .rodata,"a"
.p2align 6
.amdhsa_kernel mega_kernel
  .amdhsa_next_free_vgpr 512
  .amdhsa_next_free_sgpr 102
  .amdhsa_accum_offset 256
  .amdhsa_group_segment_fixed_size 0
  .amdhsa_kernarg_size 112
  .amdhsa_user_sgpr_count 2
  .amdhsa_user_sgpr_kernarg_segment_ptr 1
  .amdhsa_system_sgpr_workgroup_id_x 1
.end_amdhsa_kernel
'''
open(sys.argv[1], 'w').write(out)
print('instructions:', a.ninstr, 'bytes:', len(out))
```

```python
import sys
from asmlib import Asm

LAG = int(sys.argv[2]) if len(sys.argv) > 2 else 10
import os
NSTEP = int(os.environ.get("NSTEP", 64 + LAG))
TMO = int(os.environ.get("TMO", 400000))

KV_RDY = 0x0
MEM_RDY = 0x10000
X1_RDY = 0x20000
X2_RDY = 0x28000
PF = 0x2C000
DONE = 0x2D000
CSLICE = 0x30000
ZBLK = 0x38000
CPART = 0x40000
ZERO_END = 0x140000
MEMKV = 0x200000
X1 = 0x1A00000
X2 = 0x1E00000
BPART = 0x2000000
QKV = 0x3000000

KA = dict(x=0, mem0=8, wq=16, wk=24, wv=32, wo=40, wg=64, wu=72, wd=80, out=88, dbg=96, ws=104)

a = Asm()
E = a


def v(i, n=1):
    return f'v{i}' if n == 1 else f'v[{i}:{i + n - 1}]'


def ag(i, n=1):
    return f'a{i}' if n == 1 else f'a[{i}:{i + n - 1}]'


def s(i, n=1):
    return f's{i}' if n == 1 else f's[{i}:{i + n - 1}]'


WS = 's[4:5]'
XIN = 's[6:7]'
OUT = 's[8:9]'
DBG = 's[10:11]'


def timeout_exit(code):
    sv = a.nvm
    E(f'v_mov_b32 v126, {64 + 4 * code}')
    E(f'v_mov_b32 v127, {0x100 + code}')
    E(f'global_store_dword v126, v127, {DBG}')
    E('s_waitcnt vmcnt(0)')
    E('s_endpgm')
    a.nvm = sv


def poll_begin():
    L = a.newlabel('Lpoll')
    E('s_mov_b32 s90, 0')
    a.flush()
    a.label(L)
    return L


def poll_end(L, code):
    Ld = a.newlabel('Lpd')
    E('s_cmp_eq_u64 s[40:41], 0')
    E(f's_cbranch_scc1 {Ld}')
    E('s_add_u32 s90, s90, 1')
    E(f's_cmp_lt_u32 s90, {TMO}')
    a.flush()
    E(f's_cbranch_scc1 {L}')
    timeout_exit(code)
    a.label(Ld)


DUMP = int(os.environ.get("DUMP", 0))
def dump(slot, r0, n):
    if not DUMP:
        return
    E('s_lshl_b32 s23, s21, 2')
    E('s_add_u32 s23, s23, s20')
    E('s_lshl_b32 s23, s23, 13')
    E(f's_add_u32 s23, s23, {0xA000000 + slot * 0x100000}')
    E('v_add_u32 v127, s23, v7')
    for k in range(n // 4):
        E(f'global_store_dwordx4 v127, v[{r0 + 4 * k}:{r0 + 4 * k + 3}], {WS} offset:{k * 1024}')
    E('s_waitcnt vmcnt(0)')


STAMP = int(os.environ.get("STAMP", 0))
def stamp(idxreg, k):
    if not STAMP:
        return
    E('s_memrealtime s[92:93]')
    E(f's_lshl_b32 s23, {idxreg}, 6')
    E('s_lshl_b32 s24, s22, 16')
    E('s_add_u32 s23, s23, s24')
    E(f's_add_u32 s23, s23, {0xB000000 + 4 * k}')
    E('s_or_b32 s24, s20, s21')
    E('s_cmp_lg_u32 s24, 0')
    E(f's_cselect_b32 s23, {0xB100000}, s23')
    E('v_mov_b32 v126, s23')
    E('s_waitcnt lgkmcnt(0)')
    E('v_mov_b32 v127, s92')
    E(f'global_store_dword v126, v127, {WS}')


def stampval(idxreg, k, sreg):
    if not STAMP:
        return
    L = a.newlabel('Lst')
    E('s_or_b32 s23, s20, s21')
    E('s_cmp_lg_u32 s23, 0')
    E(f's_cbranch_scc1 {L}')
    E(f's_lshl_b32 s23, {idxreg}, 6')
    E('s_lshl_b32 s24, s22, 16')
    E('s_add_u32 s23, s23, s24')
    E(f's_add_u32 s23, s23, {0xB000000 + 4 * k}')
    E('v_mov_b32 v126, s23')
    E(f'v_mov_b32 v127, {sreg}')
    E(f'global_store_dword v126, v127, {WS}')
    a.flush()
    a.label(L)


def grid_wait():
    E('v_mov_b32 v124, 32')
    L = poll_begin()
    E(f'global_load_dword v125, v124, {DBG} sc1')
    E('s_waitcnt vmcnt(0)')
    E('s_movk_i32 s23, 0x100')
    E('v_cmp_gt_u32 s[40:41], s23, v125')
    poll_end(L, 11)


def barrier():
    E('s_waitcnt lgkmcnt(0)')
    E('s_barrier')


def gen_init():
    a.lines.append('.globl init_kernel\n.p2align 8\n.type init_kernel,@function\ninit_kernel:')
    nwg = ZERO_END // 4096
    E(f's_cmp_ge_u32 s2, {nwg}')
    E('s_cbranch_scc1 Linit_done')
    E(f's_load_dwordx2 s[4:5], s[0:1], {KA["ws"]}')
    E('s_lshl_b32 s3, s2, 12')
    E('v_lshlrev_b32 v1, 4, v0')
    E('v_add_u32 v1, s3, v1')
    E('v_mov_b32 v4, 0')
    E('v_mov_b32 v5, 0')
    E('v_mov_b32 v6, 0')
    E('v_mov_b32 v7, 0')
    E('s_waitcnt lgkmcnt(0)')
    E('global_store_dwordx4 v1, v[4:7], s[4:5]')
    E('s_waitcnt vmcnt(0)')
    a.label('Linit_done')
    E('s_endpgm')
    return nwg


def lane_consts():
    E('v_and_b32 v1, 15, v0')
    E('v_lshrrev_b32 v2, 4, v0')
    E('v_lshlrev_b32 v7, 4, v0')


def frag_bases(region):
    for q in range(4):
        E(f'v_add_u32 v124, {4 * q}, v2')
        E('v_xor_b32 v124, v124, v1')
        E('v_lshlrev_b32 v124, 4, v124')
        E('v_lshl_add_u32 v124, v1, 10, v124')
        E(f'v_add_u32 v{3 + q}, {region}, v124')


def load_wqkv():
    STR = 272
    E('s_lshl_b32 s23, s20, 7')
    E('v_add_u32 v24, s23, v2')
    E('v_lshlrev_b32 v25, 13, v24')
    E('s_lshl_b32 s24, s21, 8')
    E('v_lshl_add_u32 v25, v1, 4, v25')
    E('v_add_u32 v25, s24, v25')
    E(f'v_mul_u32_u24 v26, {STR}, v24')
    E('v_lshl_add_u32 v26, v1, 4, v26')
    E('v_lshrrev_b32 v27, 2, v1')
    E('v_lshl_add_u32 v27, v2, 3, v27')
    E(f'v_mul_u32_u24 v27, {STR}, v27')
    E('v_and_b32 v28, 3, v1')
    E('v_lshlrev_b32 v28, 3, v28')
    E('v_add_u32 v27, v27, v28')
    E('s_lshl_b32 s23, s20, 6')
    E('v_add_u32 v27, s23, v27')
    for q in range(1, 4):
        E(f'v_add_u32 v{27 + q}, {4 * 32 * STR * q}, v27')
    for mi, (ptr, dst) in enumerate((('s[12:13]', ('a', 0)), ('s[14:15]', ('a', 128)), ('s[16:17]', ('v', 128)))):
        for b in range(4):
            for i in range(8):
                ii = b * 8 + i
                E(f'v_add_u32 v31, {ii * 4 * 8192}, v25')
                E(f'global_load_dwordx4 v[{32 + 4 * i}:{35 + 4 * i}], v31, {ptr}')
            for i in range(8):
                ii = b * 8 + i
                E(f's_waitcnt vmcnt({7 - i})')
                E(f'ds_write_b128 v26, v[{32 + 4 * i}:{35 + 4 * i}] offset:{ii * 4 * STR}')
        barrier()
        for T in range(2):
            for ks in range(16):
                base = 27 + ks // 4
                off = (ks % 4) * 32 * STR + T * 32
                r = dst[1] + (T * 16 + ks) * 4
                p = dst[0]
                E(f'ds_read_b64_tr_b16 {p}[{r}:{r + 1}], v{base} offset:{off}')
                E(f'ds_read_b64_tr_b16 {p}[{r + 2}:{r + 3}], v{base} offset:{off + 4 * STR}')
        barrier()


def wfrag(m, T, ks):
    r = (T * 16 + ks) * 4
    if m == 0:
        return f'a[{r}:{r + 3}]'
    if m == 1:
        return f'a[{128 + r}:{128 + r + 3}]'
    return f'v[{128 + r}:{128 + r + 3}]'


def layernorm64(src, voff_sgpr, region, extra_loads=None):
    E('v_lshrrev_b32 v24, 3, v0')
    E('s_lshl_b32 s23, s20, 3')
    E('v_add_u32 v24, s23, v24')
    E('v_and_b32 v25, 7, v0')
    E('v_lshlrev_b32 v26, 10, v24')
    E('v_lshl_add_u32 v26, v25, 4, v26')
    E(f'v_add_u32 v26, {voff_sgpr}, v26')
    E('v_add_u32 v27, 32768, v26')
    hb = (92, 28)
    seq = [[], []]
    for hf in range(2):
        for i in range(8):
            E(f'global_load_dwordx4 v[{hb[hf] + 4 * i}:{hb[hf] + 3 + 4 * i}], v{26 + hf}, {src} offset:{i * 128} sc1')
            seq[hf].append(a.nvm)
    if extra_loads:
        extra_loads()
    E('v_and_b32 v27, 7, v24')
    E('v_xor_b32 v27, v27, v25')
    E('v_lshlrev_b32 v27, 4, v27')
    E('v_lshl_add_u32 v27, v24, 10, v27')
    E('v_bfe_u32 v25, v24, 3, 1')
    E('v_lshl_add_u32 v27, v25, 7, v27')
    E(f'v_add_u32 v27, {region}, v27')
    E('v_xor_b32 v25, 128, v27')

    def red8(r):
        E(f'v_add_f32_dpp v{r}, v{r}, v{r} quad_perm:[1,0,3,2] row_mask:0xf bank_mask:0xf')
        E(f'v_add_f32_dpp v{r}, v{r}, v{r} quad_perm:[2,3,0,1] row_mask:0xf bank_mask:0xf')
        E(f'v_add_f32_dpp v{r}, v{r}, v{r} row_half_mirror row_mask:0xf bank_mask:0xf')
    for hf in range(2):
        for i in range(8):
            a.wait_vm(seq[hf][i])
            for j in range(4):
                src_r = hb[hf] + 4 * i + j
                d = 60 + 8 * i + 2 * j
                E(f'v_lshlrev_b32 v{d}, 16, v{src_r}')
                E(f'v_and_b32 v{d + 1}, 0xffff0000, v{src_r}')
        E('v_pk_add_f32 v[124:125], v[60:61], v[62:63]')
        for k in range(4, 64, 2):
            E(f'v_pk_add_f32 v[124:125], v[124:125], v[{60 + k}:{61 + k}]')
        E('v_add_f32 v124, v124, v125')
        red8(124)
        E('v_mul_f32 v124, 0xbb000000, v124')
        E('v_mov_b32 v125, v124')
        for k in range(0, 64, 2):
            E(f'v_pk_add_f32 v[{60 + k}:{61 + k}], v[{60 + k}:{61 + k}], v[124:125]')
        E('v_pk_mul_f32 v[124:125], v[60:61], v[60:61]')
        for k in range(2, 64, 2):
            E(f'v_pk_fma_f32 v[124:125], v[{60 + k}:{61 + k}], v[{60 + k}:{61 + k}], v[124:125]')
        E('v_add_f32 v124, v124, v125')
        red8(124)
        E('v_mov_b32 v125, 0x3727c5ac')
        E('v_fmac_f32 v125, 0x3b000000, v124')
        E('v_rsq_f32 v124, v125')
        E('v_mov_b32 v125, v124')
        for i in range(8):
            for j in range(4):
                d = 60 + 8 * i + 2 * j
                E(f'v_pk_mul_f32 v[{d}:{d + 1}], v[{d}:{d + 1}], v[124:125]')
                E(f'v_cvt_pk_bf16_f32 v{60 + 4 * i + j}, v{d}, v{d + 1}')
            E(f'ds_write_b128 v{27 if i % 2 == 0 else 25}, v[{60 + 4 * i}:{63 + 4 * i}] offset:{hf * 32768 + (i >> 1) * 256}')


def xlane_reduce(op, r, t):
    E(f'v_mov_b32 v{t}, v{r}')
    E(f'v_permlane16_swap_b32 v{r}, v{t}')
    E(f'{op} v{r}, v{r}, v{t}')
    E(f'v_mov_b32 v{t}, v{r}')
    E(f'v_permlane32_swap_b32 v{r}, v{t}')
    E(f'{op} v{r}, v{r}, v{t}')


SC_LOG2E = 0x3e0293ee


def softmax12(base, t0):
    E(f'v_max3_f32 v{t0}, v{base}, v{base + 1}, v{base + 2}')
    for k in range(3, 11, 2):
        E(f'v_max3_f32 v{t0}, v{t0}, v{base + k}, v{base + k + 1}')
    E(f'v_max_f32 v{t0}, v{t0}, v{base + 11}')
    xlane_reduce('v_max_f32', t0, t0 + 1)
    E(f's_mov_b32 s23, {SC_LOG2E}')
    for k in range(12):
        E(f'v_sub_f32 v{base + k}, v{base + k}, v{t0}')
    for k in range(12):
        E(f'v_mul_f32 v{base + k}, s23, v{base + k}')
    for k in range(12):
        E(f'v_exp_f32 v{base + k}, v{base + k}')
    E(f'v_add_f32 v{t0}, v{base}, v{base + 1}')
    for k in range(2, 12):
        E(f'v_add_f32 v{t0}, v{t0}, v{base + k}')
    xlane_reduce('v_add_f32', t0, t0 + 1)
    E(f'v_rcp_f32 v{t0}, v{t0}')
    for k in range(12):
        E(f'v_mul_f32 v{base + k}, v{base + k}, v{t0}')


def softmax_list(R, t0):
    o = []
    o.append(f'v_max3_f32 v{t0}, v{R[0]}, v{R[1]}, v{R[2]}')
    for k in range(3, 11, 2):
        o.append(f'v_max3_f32 v{t0}, v{t0}, v{R[k]}, v{R[k + 1]}')
    o.append(f'v_max_f32 v{t0}, v{t0}, v{R[11]}')

    def xl(op):
        t = t0 + 1
        o.append(f'v_mov_b32 v{t}, v{t0}')
        o.append(f'v_permlane16_swap_b32 v{t0}, v{t}')
        o.append(f'{op} v{t0}, v{t0}, v{t}')
        o.append(f'v_mov_b32 v{t}, v{t0}')
        o.append(f'v_permlane32_swap_b32 v{t0}, v{t}')
        o.append(f'{op} v{t0}, v{t0}, v{t}')
    xl('v_max_f32')
    o.append(f's_mov_b32 s23, {SC_LOG2E}')
    o.append(f'v_mul_f32 v{t0}, s23, v{t0}')
    for k in range(12):
        o.append(f'v_fma_f32 v{R[k]}, v{R[k]}, s23, -v{t0}')
    for k in range(12):
        o.append(f'v_exp_f32 v{R[k]}, v{R[k]}')
    o.append(f'v_add_f32 v{t0}, v{R[0]}, v{R[1]}')
    for k in range(2, 12):
        o.append(f'v_add_f32 v{t0}, v{t0}, v{R[k]}')
    xl('v_add_f32')
    o.append(f'v_rcp_f32 v{t0}, v{t0}')
    for k in range(12):
        o.append(f'v_mul_f32 v{R[k]}, v{R[k]}, v{t0}')
    return o


WOF = 0
MEMT = 131072
XS = 147456
XO_REL = 12288


def gen_chain():
    a.label('Lchain')
    E(f's_load_dwordx2 s[12:13], s[0:1], {KA["wq"]}')
    E(f's_load_dwordx2 s[14:15], s[0:1], {KA["wk"]}')
    E(f's_load_dwordx2 s[16:17], s[0:1], {KA["wv"]}')
    E(f's_load_dwordx2 s[18:19], s[0:1], {KA["wo"]}')
    E(f's_load_dwordx2 s[48:49], s[0:1], {KA["mem0"]}')
    E('s_waitcnt lgkmcnt(0)')
    lane_consts()
    load_wqkv()
    stamp('s94', 1)
    STG = 131072
    STR = 1040
    E('s_lshl_b32 s23, s21, 17')
    E('s_lshl_b32 s24, s20, 12')
    E('s_add_u32 s23, s23, s24')
    E('v_add_u32 v24, s23, v7')
    E(f's_mul_i32 s24, s20, {4 * STR}')
    E('v_add_u32 v25, s24, v7')
    E(f'v_add_u32 v25, {STG}, v25')
    E('v_lshrrev_b32 v26, 2, v1')
    E('v_lshl_add_u32 v26, v2, 2, v26')
    E(f'v_mul_u32_u24 v26, {STR}, v26')
    E('v_and_b32 v27, 3, v1')
    E('v_lshl_add_u32 v26, v27, 3, v26')
    E('s_lshl_b32 s24, s20, 8')
    E('v_add_u32 v26, s24, v26')
    E(f'v_add_u32 v26, {STG}, v26')
    E('s_lshl_b32 s24, s20, 13')
    E('v_add_u32 v27, s24, v7')
    E('v_add_u32 v28, 65536, v27')
    for c in range(8):
        ks, hf = c // 2, c % 2
        E(f'v_add_u32 v29, {c * 16 * 1024}, v24')
        for i in range(4):
            E(f'global_load_dwordx4 v[{32 + 4 * i}:{35 + 4 * i}], v29, s[18:19] offset:{i * 1024}')
        for i in range(4):
            E(f's_waitcnt vmcnt({3 - i})')
            E(f'ds_write_b128 v25, v[{32 + 4 * i}:{35 + 4 * i}] offset:{i * STR}')
        barrier()
        for i in range(8):
            E(f'ds_read_b64_tr_b16 v[{48 + 2 * i}:{49 + 2 * i}], v26 offset:{i * 32}')
        for i in range(8):
            E(f's_waitcnt lgkmcnt({7 - i})')
            dreg = 27 if ks < 2 else 28
            E(f'ds_write_b64 v{dreg}, v[{48 + 2 * i}:{49 + 2 * i}] offset:{(ks % 2) * 32768 + i * 1024 + 8 * hf}')
        barrier()
    stamp('s94', 2)
    frag_bases(MEMT)
    E('v_lshrrev_b32 v24, 2, v0')
    E('v_and_b32 v25, 3, v0')
    E('v_lshrrev_b32 v26, 1, v25')
    E('v_xor_b32 v26, v26, v24')
    E('v_lshlrev_b32 v26, 4, v26')
    E('v_and_b32 v27, 1, v25')
    E('v_lshlrev_b32 v27, 3, v27')
    E('v_lshl_add_u32 v27, v24, 10, v27')
    E('s_lshl_b32 s23, s20, 8')
    E('v_add_u32 v27, s23, v27')
    E(f'v_add_u32 v27, {MEMT}, v27')
    E('v_or_b32 v8, v27, v26')
    E(f'v_add_u32 v21, {XS}, v7')
    E('s_mul_i32 s23, s20, 3072')
    E('v_add_u32 v9, s23, v21')
    E('s_lshl_b32 s23, s20, 10')
    E('v_add_u32 v20, s23, v21')
    E(f'v_add_u32 v20, {XO_REL}, v20')
    E('v_mov_b32 v10, 0xfffffffe')
    E('s_lshl_b32 s23, s20, 17')
    E('s_lshl_b32 s24, s21, 9')
    E('s_add_u32 s23, s23, s24')
    E(f's_add_u32 s23, s23, {CPART}')
    E('v_lshlrev_b32 v24, 5, v1')
    E('v_lshl_add_u32 v24, v2, 3, v24')
    E('v_add_u32 v11, s23, v24')
    E('v_lshrrev_b32 v24, 2, v1')
    E('v_and_b32 v25, 3, v1')
    E('s_lshl_b32 s23, s20, 2')
    E('v_add_u32 v26, s23, v25')
    E('v_lshlrev_b32 v26, 5, v26')
    E('v_lshl_add_u32 v26, v24, 3, v26')
    E('v_lshl_add_u32 v26, v2, 9, v26')
    E('s_lshl_b32 s24, s21, 14')
    E(f's_add_u32 s24, s24, {CPART}')
    E('v_add_u32 v12, s24, v26')
    E('v_add_u32 v26, s23, v25')
    E('v_lshl_add_u32 v27, v26, 2, v24')
    E('v_lshlrev_b32 v27, 4, v27')
    E('s_lshl_b32 s24, s21, 10')
    E(f's_add_u32 s24, s24, {CSLICE}')
    E('v_add_u32 v13, s24, v27')
    E('v_and_b32 v27, 7, v26')
    E('v_lshlrev_b32 v27, 10, v27')
    E('v_lshl_add_u32 v27, v24, 3, v27')
    E('s_lshl_b32 s24, s21, 5')
    E('v_add_u32 v27, s24, v27')
    E('global_load_dwordx2 v[28:29], v27, s[48:49]')
    E('v_cmp_le_u32 s[50:51], 8, v26')
    E('s_lshl_b32 s23, s20, 13')
    E(f's_add_u32 s23, s23, {CSLICE}')
    E('v_add_u32 v14, s23, v7')
    E('v_add_u32 v15, 4096, v14')
    E('s_lshl_b32 s23, s20, 13')
    E('v_add_u32 v22, s23, v7')
    E('v_add_u32 v23, 65536, v22')
    E('s_waitcnt vmcnt(0)')
    E('v_mov_b32 v16, v28')
    E('v_mov_b32 v17, v29')
    E('v_mov_b32 v18, 0')
    E('v_mov_b32 v19, 0')
    E('v_cmp_le_u32 s[44:45], 8, v1')
    E('v_lshrrev_b32 v24, 1, v2')
    E('v_lshrrev_b32 v25, 3, v1')
    E('v_cmp_eq_u32 s[46:47], v24, v25')
    for r in range(80, 112):
        E(f'v_mov_b32 v{r}, 0')
    E('v_lshrrev_b32 v24, 2, v0')
    E('v_and_b32 v24, 7, v24')
    E('v_lshlrev_b32 v24, 10, v24')
    E('v_and_b32 v25, 3, v0')
    E('v_lshl_add_u32 v24, v25, 3, v24')
    E('s_lshl_b32 s23, s20, 8')
    E('v_add_u32 v24, s23, v24')
    for i in range(8):
        E(f'global_load_dwordx2 v[{48 + 2 * i}:{49 + 2 * i}], v24, s[48:49] offset:{i * 32}')
    for i in range(8):
        E(f's_waitcnt vmcnt({7 - i})')
        E(f'v_xor_b32 v25, {i << 5}, v8')
        E(f'ds_write_b64 v25, v[{48 + 2 * i}:{49 + 2 * i}]')
    E('s_mov_b32 s30, 0')
    E('s_lshl_b32 s52, s21, 2')
    E('s_add_u32 s52, s52, s20')
    E('s_mul_i32 s53, s21, 24576')
    E('s_lshl_b32 s23, s20, 10')
    E('s_add_u32 s53, s53, s23')
    E(f's_add_u32 s53, s53, {QKV}')

    E('s_lshl_b32 s23, s20, 10')
    E(f's_add_u32 s54, s23, {ZBLK}')

    def blockbase(dst, segreg, l):
        E(f's_add_u32 s23, {segreg}, {l * 64}')
        E(f's_mul_i32 s23, s23, {32 * 24576}')
        E('s_add_u32 s23, s23, s53')
        E(f's_cmp_lt_u32 {segreg}, 64')
        E(f's_cselect_b32 {dst}, s23, s54')

    def flag_addr(segreg, l):
        E(f's_min_u32 s23, {segreg}, 63')
        E(f's_add_u32 s23, s23, {l * 64}')
        E('s_lshl_b32 s23, s23, 7')
        E('s_add_u32 s23, s23, s52')
        E('s_lshl_b32 s23, s23, 2')
        E('v_mov_b32 v124, s23')

    def flag_pre(segreg, l):
        flag_addr(segreg, l)
        E(f'global_load_dword v{18 + l}, v124, {WS} offset:{KV_RDY} sc1')

    def flag_sync(segreg, l):
        flag_addr(segreg, l)
        L = poll_begin()
        E(f'global_load_dword v125, v124, {WS} offset:{KV_RDY} sc1')
        E('s_waitcnt vmcnt(0)')
        E('v_cmp_ne_u32 s[40:41], 1, v125')
        poll_end(L, 1)

    def flag_chk(segreg, l):
        Lok = a.newlabel('Lfok')
        E(f's_cmp_ge_u32 {segreg}, 64')
        E(f's_cbranch_scc1 {Lok}')
        E(f'v_cmp_ne_u32 s[40:41], 1, v{18 + l}')
        E('s_cmp_eq_u64 s[40:41], 0')
        E(f's_cbranch_scc1 {Lok}')
        sv = a.nvm
        flag_sync(segreg, l)
        a.nvm = sv
        a.flush()
        a.label(Lok)

    def load_k(segreg, l):
        kb = 80 + 8 * l
        blockbase('s24', segreg, l)
        E('s_add_u32 s24, s24, 8192')
        E('v_add_u32 v124, s24, v7')
        E('v_add_u32 v125, 4096, v124')
        E(f'global_load_dwordx4 v[{kb}:{kb + 3}], v124, {WS} sc1')
        E(f'global_load_dwordx4 v[{kb + 4}:{kb + 7}], v125, {WS} sc1')

    def load_v(segreg, l):
        vb = 96 + 8 * l
        blockbase('s24', segreg, l)
        E('s_lshl_b32 s25, s20, 10')
        E('s_add_u32 s24, s24, s25')
        E('s_add_u32 s24, s24, 16384')
        E('v_add_u32 v124, s24, v7')
        E(f'global_load_dwordx4 v[{vb}:{vb + 3}], v124, {WS} sc1')
        E(f'global_load_dwordx4 v[{vb + 4}:{vb + 7}], v124, {WS} offset:1024 sc1')

    def mem_flag(treg):
        E(f's_lshl_b32 s23, {treg}, 7')
        E('s_add_u32 s23, s23, s52')
        E('s_lshl_b32 s23, s23, 2')
        E('v_mov_b32 v124, s23')
        E('v_mov_b32 v125, 1')
        E('v_add_u32 v124, %d, v124' % MEM_RDY)
        E(f'global_store_dword v124, v125, {WS} sc1')

    for ww in range(3):
        E(f's_add_u32 s23, s20, {ww + 1}')
        E('s_and_b32 s23, s23, 3')
        E('s_mul_i32 s23, s23, 3072')
        E(f'v_add_u32 v{ww}, s23, v21')
    grid_wait()
    E('s_mov_b32 s35, 0')
    E(f's_sub_u32 s36, s35, {LAG}')
    flag_sync('s35', 0)
    load_k('s35', 0)
    load_k('s36', 1)
    E('s_mov_b32 s35, 1')
    E(f's_sub_u32 s36, s35, {LAG}')
    flag_pre('s35', 0)
    flag_pre('s36', 1)
    E('s_waitcnt vmcnt(0)')
    a.flush()
    stamp('s94', 3)
    E('s_mov_b32 s39, 95')
    a.label('Lchain_step')

    class Rec:
        def __init__(self):
            self.items = []

        def __enter__(self):
            global E
            self.old = E
            E = self.items.append
            return self.items

        def __exit__(self, *x):
            global E
            E = self.old

    def popper(stream):
        def pop(n):
            for _ in range(n):
                if not stream:
                    return
                it = stream.pop(0)
                if callable(it):
                    it()
                else:
                    E(it)
        return pop
    E('s_waitcnt lgkmcnt(0)')
    stamp('s30', 0)
    marks = {}
    nvm0 = a.nvm
    for wv in range(1, 4):
        E(f's_cmp_eq_u32 s20, {wv}')
        E(f's_cbranch_scc1 Lp1_{wv}')
    for wv in range(4):
        a.flush()
        a.label(f'Lp1_{wv}')
        a.nvm = nvm0
        with Rec() as S1:
            E(f's_sub_u32 s36, s30, {LAG}')
            load_v('s30', 0)
            load_v('s36', 1)
            S1.append(lambda: marks.__setitem__('V', a.nvm))
            mem_flag('s39')
            E('s_lshl_b32 s23, s30, 5')
            E('s_add_u32 s23, s23, s21')
            E('s_lshl_b32 s23, s23, 13')
            E('s_lshl_b32 s24, s20, 10')
            E('s_add_u32 s23, s23, s24')
            E(f's_add_u32 s33, s23, {MEMKV}')
            E('s_add_u32 s31, s30, 1')
            E('s_and_b32 s31, s31, 1')
        pop = popper(S1)
        order = list(range(4 * wv, 4 * wv + 4)) + [k for k in range(16) if k // 4 != wv]
        rseq = {}

        def rd(pos):
            ks = order[pos]
            E(f'ds_read_b128 v[{48 + 4 * (pos % 8)}:{51 + 4 * (pos % 8)}], v{3 + ks % 4} offset:{(ks // 4) * 256}')
            rseq[pos] = a.nds
        for pos in range(4):
            rd(pos)
        for pos in range(16):
            ks = order[pos]
            a.wait_ds(rseq[pos])
            mf = f'v[{48 + 4 * (pos % 8)}:{51 + 4 * (pos % 8)}]'
            for m in range(2):
                for T in range(2):
                    acc = f'v[{24 + 8 * m + 4 * T}:{27 + 8 * m + 4 * T}]'
                    E(f'v_mfma_f32_16x16x32_bf16 {acc}, {wfrag(m, T, ks)}, {mf}, {acc if pos else 0}')
                    pop(1)
            if pos == 1:
                E('s_barrier')
                for p2 in range(4, 10):
                    rd(p2)
            elif pos >= 2 and pos + 8 < 16:
                rd(pos + 8)
        pop(1000)
        if wv < 3:
            E('s_branch Lp1_done')
    a.flush()
    a.label('Lp1_done')
    stamp('s30', 1)
    E('v_add_u32 v124, s33, v7')
    for T in range(2):
        for j in range(2):
            E(f'v_cvt_pk_bf16_f32 v{112 + 2 * T + j}, v{24 + 4 * T + 2 * j}, v{25 + 4 * T + 2 * j}')
            E(f'v_cvt_pk_bf16_f32 v{116 + 2 * T + j}, v{32 + 4 * T + 2 * j}, v{33 + 4 * T + 2 * j}')
    for c in range(2):
        for kt in range(2):
            kb = 80 + 8 * c + 4 * kt
            d = 48 + 8 * c + 4 * kt
            E(f'v_mfma_f32_16x16x32_bf16 v[{d}:{d + 3}], v[{kb}:{kb + 3}], v[112:115], 0')
    E('v_mfma_f32_16x16x32_bf16 v[76:79], v[116:119], v[112:115], 0')
    E(f'global_store_dwordx4 v124, v[116:119], {WS} sc1')
    E('s_add_u32 s35, s30, 1')
    E(f's_sub_u32 s36, s35, {LAG}')
    for k in range(8):
        E(f'v_cndmask_b32 v{68 + k}, v{48 + k}, v{56 + k}, s[44:45]')
    for b in range(3):
        E(f'ds_write_b128 v9, v[{68 + 4 * b}:{71 + 4 * b}] offset:{b * 1024}')
    barrier()
    stamp('s30', 2)
    SR = list(range(68, 80))
    seqs = {}
    XB = (24, 80, 112)
    for ww in range(3):
        for b in range(3):
            r = XB[ww] + 4 * b
            E(f'ds_read_b128 v[{r}:{r + 3}], v{ww} offset:{b * 1024}')
    seqs[0] = a.nds
    fseq = {}

    def rd2(ks):
        E(f'ds_read_b128 v[{48 + 4 * (ks % 4)}:{51 + 4 * (ks % 4)}], v{3 + ks % 4} offset:{(ks // 4) * 256}')
        fseq[ks] = a.nds
    for ks in range(4):
        rd2(ks)
    flag_chk('s35', 0)
    flag_chk('s36', 1)
    with Rec() as S2:
        E('s_add_u32 s37, s30, 2')
        E(f's_sub_u32 s38, s37, {LAG}')
        flag_pre('s37', 0)
        flag_pre('s38', 1)
        E('v_mov_b32 v124, 0xf149f2ca')
        S2.append(lambda: a.wait_ds(seqs[0]))
        for k in range(0, 12, 2):
            E(f'v_pk_add_f32 v[{24 + k}:{25 + k}], v[{24 + k}:{25 + k}], v[{80 + k}:{81 + k}]')
            E(f'v_pk_add_f32 v[{68 + k}:{69 + k}], v[{68 + k}:{69 + k}], v[{112 + k}:{113 + k}]')
        for k in range(0, 12, 2):
            E(f'v_pk_add_f32 v[{68 + k}:{69 + k}], v[{68 + k}:{69 + k}], v[{24 + k}:{25 + k}]')
        for k in range(4):
            E(f'v_cndmask_b32 v{SR[8 + k]}, v124, v{SR[8 + k]}, s[46:47]')
        for it in softmax_list(SR, 124):
            E(it)
        for j in range(4):
            E(f'v_cvt_pk_bf16_f32 v{24 + j}, v{SR[2 * j]}, v{SR[2 * j + 1]}')
        for j in range(2):
            E(f'v_cvt_pk_bf16_f32 v{36 + j}, v{SR[8 + 2 * j]}, v{SR[9 + 2 * j]}')
        for j in range(4):
            E(f'v_cndmask_b32 v{28 + j}, v{24 + j}, 0, s[44:45]')
            E(f'v_cndmask_b32 v{32 + j}, 0, v{24 + j}, s[44:45]')
        load_k('s35', 0)
        load_k('s36', 1)
    pop = popper(S2)
    per = (len(S2) + 31) // 32
    for ks in range(16):
        a.wait_ds(fseq[ks])
        mf = f'v[{48 + 4 * (ks % 4)}:{51 + 4 * (ks % 4)}]'
        for T in range(2):
            acc = f'v[{40 + 4 * T}:{43 + 4 * T}]'
            E(f'v_mfma_f32_16x16x32_bf16 {acc}, {mf}, {wfrag(2, T, ks)}, {acc if ks else 0}')
            pop(per)
        if ks + 4 < 16:
            rd2(ks + 4)
    pop(1000)
    SETS = (48, 24, 64)

    def rdwo(i):
        st = SETS[i % 3]
        for ks in range(4):
            E(f'ds_read_b128 v[{st + 4 * ks}:{st + 3 + 4 * ks}], v{22 + ks // 2} offset:{(ks % 2) * 32768 + i * 1024}')
        seqs['wo', i] = a.nds
    rdwo(0)
    for T in range(2):
        for j in range(2):
            E(f'v_cvt_pk_bf16_f32 v{120 + 2 * T + j}, v{40 + 4 * T + 2 * j}, v{41 + 4 * T + 2 * j}')
    E('v_add_u32 v124, s33, v7')
    E('v_add_u32 v124, 4096, v124')
    a.wait_vm(marks['V'])
    for et in range(2):
        o = f'v[{64 + 4 * et}:{67 + 4 * et}]'
        E(f'v_mfma_f32_16x16x32_bf16 {o}, v[{96 + 4 * et}:{99 + 4 * et}], v[28:31], 0')
    for et in range(2):
        o = f'v[{64 + 4 * et}:{67 + 4 * et}]'
        E(f'v_mfma_f32_16x16x32_bf16 {o}, v[{104 + 4 * et}:{107 + 4 * et}], v[32:35], {o}')
    for et in range(2):
        o = f'v[{40 + 4 * et}:{43 + 4 * et}]'
        E(f'v_mfma_f32_16x16x16_bf16 {o}, v[{120 + 2 * et}:{121 + 2 * et}], v[36:37], 0')
    E(f'global_store_dwordx4 v124, v[120:123], {WS} sc1')
    for k in range(0, 8, 2):
        E(f'v_pk_add_f32 v[{64 + k}:{65 + k}], v[{64 + k}:{65 + k}], v[{40 + k}:{41 + k}]')
    for et in range(2):
        for j in range(2):
            E(f'v_cvt_pk_bf16_f32 v{72 + 2 * et + j}, v{64 + 4 * et + 2 * j}, v{65 + 4 * et + 2 * j}')
    E('ds_write_b128 v20, v[72:75]')
    barrier()
    stamp('s30', 3)
    for ks in range(4):
        E(f'ds_read_b128 v[{96 + 4 * ks}:{99 + 4 * ks}], v21 offset:{XO_REL + ks * 1024}')
    rdwo(1)
    stamp('s30', 4)

    def op_store(i):
        acc = 40 + 4 * (i % 2)
        pk = 124 + 2 * (i % 2)
        for j in range(2):
            E(f'v_cvt_pk_bf16_f32 v{pk + j}, v{acc + 2 * j}, v{acc + 2 * j + 1}')
        for j in range(2):
            E(f'v_and_or_b32 v{pk + j}, v{pk + j}, v10, s31')
        E(f'v_add_u32 v{acc}, {i * 16384}, v11')
        E(f'global_store_dwordx2 v{acc}, v[{pk}:{pk + 1}], {WS}')
    for i in range(8):
        if i + 2 < 8:
            rdwo(i + 2)
        a.wait_ds(seqs['wo', max(i, 1)] if i < 1 else seqs['wo', i])
        st = SETS[i % 3]
        acc = 40 + 4 * (i % 2)
        for ks in range(4):
            E(f'v_mfma_f32_16x16x32_bf16 v[{acc}:{acc + 3}], v[{st + 4 * ks}:{st + 3 + 4 * ks}], v[{96 + 4 * ks}:{99 + 4 * ks}], {f"v[{acc}:{acc + 3}]" if ks else 0}')
        if i > 0:
            op_store(i - 1)
    op_store(7)
    stamp('s30', 5)
    L = poll_begin()
    E('v_add_u32 v124, 4096, v12')
    E('v_add_u32 v125, 8192, v12')
    E('v_add_u32 v126, 12288, v12')
    for i in range(8):
        ar = ('v12', 'v124', 'v125', 'v126')[i // 2]
        E(f'global_load_dwordx2 v[{48 + 2 * i}:{49 + 2 * i}], {ar}, {WS} offset:{(i % 2) * 2048} sc1')
    E('s_waitcnt vmcnt(0)')
    E('v_and_b32 v124, v48, v50')
    E('v_or3_b32 v125, v48, v50, v52')
    for k in (52, 54, 56, 58, 60, 62):
        E(f'v_and_b32 v124, v124, v{k}')
    E('v_or3_b32 v125, v125, v54, v56')
    E('v_or3_b32 v125, v125, v58, v60')
    E('v_or_b32 v125, v125, v62')
    E('v_and_b32 v124, 1, v124')
    E('v_and_b32 v125, 1, v125')
    E('v_cmp_ne_u32 s[40:41], s31, v124')
    E('v_cmp_ne_u32 s[42:43], s31, v125')
    E('s_or_b64 s[40:41], s[40:41], s[42:43]')
    poll_end(L, 2)
    stamp('s30', 6)
    stampval('s30', 10, 's90')
    for i in range(8):
        for j in range(2):
            r = 48 + 2 * i + j
            if i == 0:
                E(f'v_lshlrev_b32 v{24 + 2 * j}, 16, v{r}')
                E(f'v_and_b32 v{25 + 2 * j}, 0xffff0000, v{r}')
            else:
                t = 28 + 2 * j
                E(f'v_lshlrev_b32 v{t}, 16, v{r}')
                E(f'v_and_b32 v{t + 1}, 0xffff0000, v{r}')
                E(f'v_pk_add_f32 v[{24 + 2 * j}:{25 + 2 * j}], v[{24 + 2 * j}:{25 + 2 * j}], v[{t}:{t + 1}]')
    for j in range(4):
        xlane_reduce('v_add_f32', 24 + j, 28 + j)
    E('s_add_u32 s32, s30, 1')
    E('v_cvt_pk_bf16_f32 v24, v24, v25')
    E('v_cvt_pk_bf16_f32 v25, v26, v27')
    E('v_mov_b32 v26, s32')
    E('v_mov_b32 v27, s32')
    Lo = a.newlabel('Lov')
    E(f's_cmp_gt_u32 s32, {LAG}')
    E(f's_cbranch_scc1 {Lo}')
    for j in range(2):
        E(f'v_cndmask_b32 v{24 + j}, v{24 + j}, v{16 + j}, s[50:51]')
    a.flush()
    a.label(Lo)
    E('s_mov_b64 exec, 0xffff')
    E(f'global_store_dwordx4 v13, v[24:27], {WS}')
    E('s_mov_b64 exec, -1')
    E(f's_cmp_ge_u32 s32, {NSTEP}')
    E('s_cbranch_scc1 Lchain_done')
    stamp('s30', 7)
    L = poll_begin()
    for i in range(8):
        E(f'global_load_dwordx4 v[{48 + 4 * i}:{51 + 4 * i}], v{14 + i // 4}, {WS} offset:{(i % 4) * 1024} sc1')
    E('s_waitcnt vmcnt(0)')
    E('v_and_b32 v124, v50, v54')
    E('v_or3_b32 v125, v50, v54, v58')
    for k in (58, 62, 66, 70, 74, 78):
        E(f'v_and_b32 v124, v124, v{k}')
    E('v_or3_b32 v125, v125, v62, v66')
    E('v_or3_b32 v125, v125, v70, v74')
    E('v_or_b32 v125, v125, v78')
    E('v_cmp_ne_u32 s[40:41], s32, v124')
    E('v_cmp_ne_u32 s[42:43], s32, v125')
    E('s_or_b64 s[40:41], s[40:41], s[42:43]')
    poll_end(L, 3)
    stamp('s30', 8)
    stampval('s30', 11, 's90')
    for i in range(8):
        E(f'v_xor_b32 v{24 + i}, {i << 5}, v8')
        E(f'ds_write_b64 v{24 + i}, v[{48 + 4 * i}:{49 + 4 * i}]')
    E('s_mov_b32 s39, s30')
    E('s_mov_b32 s30, s32')
    a.flush()
    E('s_branch Lchain_step')
    a.label('Lchain_done')
    mem_flag('s30')
    E('s_waitcnt vmcnt(0)')
    E('s_endpgm')


def make_tables(nteams, k1, k2):
    items = []
    for p in range(32):
        items.append((2 * p + k1, 0, p))
        items.append((2 * p + LAG + k2, 1, p))
    items.sort()
    tabs = [[] for _ in range(nteams)]
    for i, (k, l, p) in enumerate(items):
        tabs[i % nteams].append(l * 32 + p)
    return tabs


def table_ptr(label, first_xcc):
    E('s_getpc_b64 s[54:55]')
    a.label('Lpc' + label)
    E(f's_add_u32 s54, s54, {label} - Lpc{label}')
    E('s_addc_u32 s55, s55, 0')
    E(f's_sub_u32 s23, s22, {first_xcc}')
    E(f's_mul_i32 s23, s23, {4 * 64}')
    E('s_add_u32 s54, s54, s23')
    E('s_addc_u32 s55, s55, 0')


def gen_A():
    tabs = make_tables(2, -8, -4)
    a.label('LroleA')
    E(f's_load_dwordx2 s[12:13], s[0:1], {KA["wq"]}')
    E(f's_load_dwordx2 s[14:15], s[0:1], {KA["wk"]}')
    E(f's_load_dwordx2 s[16:17], s[0:1], {KA["wv"]}')
    E('s_waitcnt lgkmcnt(0)')
    lane_consts()
    load_wqkv()
    stamp('s94', 1)
    XN = 0
    frag_bases(XN)
    grid_wait()
    table_ptr('Ltab_A', 1)
    E('s_mov_b32 s30, 0')
    E('s_mul_i32 s53, s21, 24576')
    E('s_lshl_b32 s23, s20, 10')
    E('s_add_u32 s53, s53, s23')
    E(f's_add_u32 s53, s53, {QKV}')
    E('s_lshl_b32 s52, s21, 2')
    E('s_add_u32 s52, s52, s20')
    a.flush()
    a.label('LA_item')
    E('s_lshl_b32 s23, s30, 2')
    E('s_load_dword s31, s[54:55], s23')
    E('s_waitcnt lgkmcnt(0)')
    E('s_cmp_ge_u32 s31, 64')
    E('s_cbranch_scc1 LA_done')
    stamp('s30', 0)
    E('s_and_b32 s32, s31, 31')
    E('s_lshl_b32 s33, s32, 16')
    E('s_lshl_b32 s31, s31, 1')
    E('s_cmp_ge_u32 s31, 64')
    E('s_cbranch_scc1 LA_l2')
    layernorm64(XIN, 's33', XN)
    a.flush()
    E('s_branch LA_ln_done')
    a.label('LA_l2')
    E('s_lshl_b32 s23, s32, 9')
    E(f's_add_u32 s23, s23, {X2_RDY}')
    E('v_lshlrev_b32 v124, 3, v0')
    E('v_add_u32 v124, s23, v124')
    L = poll_begin()
    E(f'global_load_dwordx2 v[24:25], v124, {WS} sc1')
    E('s_waitcnt vmcnt(0)')
    E('v_and_b32 v24, v24, v25')
    E('v_cmp_ne_u32 s[40:41], 1, v24')
    poll_end(L, 4)
    E(f's_add_u32 s33, s33, {X2}')
    layernorm64(WS, 's33', XN)
    a.flush()
    a.label('LA_ln_done')
    barrier()
    stamp('s30', 1)

    def kvflag(sg):
        E(f's_add_u32 s23, s31, {sg}')
        E('s_lshl_b32 s23, s23, 7')
        E('s_add_u32 s23, s23, s52')
        E('s_lshl_b32 s23, s23, 2')
        E('v_mov_b32 v124, s23')
        E('v_mov_b32 v125, 1')
        E(f'global_store_dword v124, v125, {WS} offset:{KV_RDY} sc1')
    seq0 = None
    for sg in range(2):
        def rd(ks):
            for rt in range(2):
                r = 72 + 8 * (ks % 4) + 4 * rt
                E(f'ds_read_b128 v[{r}:{r + 3}], v{3 + ks % 4} offset:{sg * 32768 + rt * 16384 + (ks // 4) * 256}')
        for ks in range(4):
            rd(ks)
        for ks in range(16):
            E(f's_waitcnt lgkmcnt({min(6, 2 * (15 - ks))})')
            for rt in range(2):
                r = 72 + 8 * (ks % 4) + 4 * rt
                mf = f'v[{r}:{r + 3}]'
                for m in range(2):
                    for T in range(2):
                        ar = 24 + 16 * m + 8 * rt + 4 * T
                        acc = f'v[{ar}:{ar + 3}]'
                        E(f'v_mfma_f32_16x16x32_bf16 {acc}, {wfrag(m, T, ks)}, {mf}, {acc if ks else 0}')
                for T in range(2):
                    ar = 56 + 8 * rt + 4 * T
                    acc = f'v[{ar}:{ar + 3}]'
                    E(f'v_mfma_f32_16x16x32_bf16 {acc}, {mf}, {wfrag(2, T, ks)}, {acc if ks else 0}')
            if ks + 4 < 16:
                rd(ks + 4)
            if sg == 1 and ks == 2:
                a.wait_vm(seq0)
                kvflag(0)
        E(f's_add_u32 s23, s31, {sg}')
        E(f's_mul_i32 s23, s23, {32 * 24576}')
        E('s_add_u32 s23, s23, s53')
        E('v_add_u32 v22, s23, v7')
        for m in range(2):
            for rt in range(2):
                d = 104 + 8 * m + 4 * rt
                for T in range(2):
                    for j in range(2):
                        ar = 24 + 16 * m + 8 * rt + 4 * T + 2 * j
                        E(f'v_cvt_pk_bf16_f32 v{d + 2 * T + j}, v{ar}, v{ar + 1}')
                E(f'v_add_u32 v23, {m * 8192 + rt * 4096}, v22')
                E(f'global_store_dwordx4 v23, v[{d}:{d + 3}], {WS} sc1')
        E('s_lshl_b32 s24, s20, 10')
        E('v_add_u32 v22, s24, v22')
        E('v_add_u32 v22, 16384, v22')
        for T in range(2):
            d = 16 + 4 * T if False else 120 - 0
            d = (120, 8)[T]
            for rt in range(2):
                for j in range(2):
                    ar = 56 + 8 * rt + 4 * T + 2 * j
                    E(f'v_cvt_pk_bf16_f32 v{d + 2 * rt + j}, v{ar}, v{ar + 1}')
            E(f'global_store_dwordx4 v22, v[{d}:{d + 3}], {WS} offset:{T * 1024} sc1')
        seq0 = a.nvm
    stamp('s30', 2)
    E('s_waitcnt vmcnt(0)')
    kvflag(1)
    stamp('s30', 3)
    E('s_add_u32 s30, s30, 1')
    E('s_barrier')
    a.flush()
    E('s_branch LA_item')
    a.label('LA_done')
    E('s_waitcnt vmcnt(0)')
    E('s_endpgm')
    return tabs


def team_consts():
    E('s_lshl_b32 s23, s56, 21')
    E(f's_add_u32 s23, s23, {BPART}')
    E('s_lshl_b32 s24, s20, 19')
    E('s_add_u32 s24, s24, s23')
    E('s_lshl_b32 s25, s21, 11')
    E('s_add_u32 s24, s24, s25')
    E('v_add_u32 v11, s24, v7')
    E('s_lshl_b32 s24, s21, 16')
    E('s_add_u32 s24, s24, s23')
    E('s_lshr_b32 s25, s20, 1')
    E('s_lshl_b32 s25, s25, 10')
    E('s_add_u32 s24, s24, s25')
    E('s_and_b32 s25, s20, 1')
    E('s_lshl_b32 s25, s25, 9')
    E('s_add_u32 s24, s24, s25')
    E('v_lshrrev_b32 v24, 5, v0')
    E('v_and_b32 v25, 31, v0')
    E('v_lshlrev_b32 v25, 4, v25')
    E('v_lshl_add_u32 v25, v24, 11, v25')
    E('v_add_u32 v12, s24, v25')
    E('s_lshr_b32 s25, s20, 1')
    E('s_lshl_b32 s25, s25, 5')
    E('v_lshl_add_u32 v26, v24, 4, v1')
    E('v_add_u32 v26, s25, v26')
    E('v_lshlrev_b32 v26, 10, v26')
    E('v_and_b32 v27, 1, v2')
    E('s_and_b32 s25, s20, 1')
    E('s_lshl_b32 s25, s25, 4')
    E('s_lshl_b32 s24, s21, 5')
    E('s_add_u32 s25, s25, s24')
    E('v_lshl_add_u32 v26, v27, 3, v26')
    E('v_add_u32 v13, s25, v26')
    E('v_cmp_eq_u32 s[58:59], 1, v24')
    E('s_lshl_b32 s23, s56, 7')
    E(f's_add_u32 s57, s23, {PF}')
    E('s_lshl_b32 s23, s56, 9')
    E(f's_add_u32 s60, s23, {DONE}')


def done_pre():
    E('v_lshlrev_b32 v124, 3, v0')
    E('v_add_u32 v124, s60, v124')
    E(f'global_load_dwordx2 v[16:17], v124, {WS} sc1')


def wait_done(code):
    Lok = a.newlabel('Ldok')
    E('s_sub_u32 s23, s34, 1')
    E('v_min_u32 v16, v16, v17')
    E('v_cmp_gt_u32 s[40:41], s23, v16')
    E('s_cmp_eq_u64 s[40:41], 0')
    E(f's_cbranch_scc1 {Lok}')
    E('v_lshlrev_b32 v124, 3, v0')
    E('v_add_u32 v124, s60, v124')
    L = poll_begin()
    E(f'global_load_dwordx2 v[126:127], v124, {WS} sc1')
    E('s_waitcnt vmcnt(0)')
    E('v_min_u32 v126, v126, v127')
    E('v_cmp_gt_u32 s[40:41], s23, v126')
    poll_end(L, code)
    a.flush()
    a.label(Lok)


def publish_and_reduce(nprod, code, producer_mask_label=None):
    E('s_waitcnt vmcnt(0)')
    E('s_barrier')
    E('s_lshl_b32 s23, s21, 2')
    E('s_add_u32 s23, s23, s57')
    E('v_mov_b32 v124, s23')
    E('v_mov_b32 v125, s34')
    E(f'global_store_dword v124, v125, {WS}')
    if producer_mask_label:
        a.flush()
        a.label(producer_mask_label)
    E('v_and_b32 v124, 31, v0')
    E(f'v_min_u32 v124, {nprod - 1}, v124')
    E('v_lshlrev_b32 v124, 2, v124')
    E('v_add_u32 v124, s57, v124')
    L = poll_begin()
    E(f'global_load_dword v125, v124, {WS} sc1')
    E('s_waitcnt vmcnt(0)')
    E('v_cmp_gt_u32 s[40:41], s34, v125')
    poll_end(L, code)
    nl = nprod // 2
    sq = []
    for i in range(nl):
        E(f'v_add_u32 v124, {i * 4096}, v12')
        E(f'global_load_dwordx4 v[{40 + 4 * i}:{43 + 4 * i}], v124, {WS} sc1')
        sq.append(a.nvm)
    for i in range(nl):
        a.wait_vm(sq[i])
        for j in range(4):
            r = 40 + 4 * i + j
            if i == 0:
                E(f'v_lshlrev_b32 v{24 + 2 * j}, 16, v{r}')
                E(f'v_and_b32 v{25 + 2 * j}, 0xffff0000, v{r}')
            else:
                E(f'v_lshlrev_b32 v124, 16, v{r}')
                E(f'v_and_b32 v125, 0xffff0000, v{r}')
                E(f'v_pk_add_f32 v[{24 + 2 * j}:{25 + 2 * j}], v[{24 + 2 * j}:{25 + 2 * j}], v[124:125]')
    E('s_lshl_b32 s23, s52, 2')
    E('s_add_u32 s23, s23, s60')
    E('v_mov_b32 v124, s23')
    E('v_mov_b32 v125, s34')
    E(f'global_store_dword v124, v125, {WS}')
    for k in range(8):
        E(f'v_mov_b32 v{32 + k}, v{24 + k}')
        E(f'v_permlane32_swap_b32 v{24 + k}, v{32 + k}')
        E(f'v_add_f32 v{24 + k}, v{24 + k}, v{32 + k}')
    for k in range(4):
        E(f'v_cndmask_b32 v{24 + k}, v{24 + k}, v{28 + k}, s[58:59]')


def partial_store(i, accs):
    for rtp in range(2):
        for h2 in range(2):
            ar = accs[2 * rtp + h2]
            for j in range(2):
                E(f'v_cvt_pk_bf16_f32 v{104 + 4 * rtp + 2 * h2 + j}, v{ar + 2 * j}, v{ar + 2 * j + 1}')
    E(f'v_add_u32 v124, {i * 65536}, v11')
    E(f'global_store_dwordx4 v124, v[104:107], {WS}')
    E(f'global_store_dwordx4 v124, v[108:111], {WS} offset:1024')


def gen_B():
    a.label('LroleB')
    E(f's_load_dwordx2 s[18:19], s[0:1], {KA["wo"]}')
    E('s_waitcnt lgkmcnt(0)')
    lane_consts()
    STR = 1040
    E('s_lshl_b32 s23, s21, 17')
    E('s_lshl_b32 s24, s20, 15')
    E('s_add_u32 s23, s23, s24')
    E('v_add_u32 v24, s23, v7')
    E(f's_mul_i32 s24, s20, {32 * STR}')
    E('v_add_u32 v25, s24, v7')
    for b in range(4):
        E(f'v_add_u32 v26, {b * 8192}, v24')
        E(f'v_add_u32 v27, {b * 8192 + 4096}, v24')
        for i in range(8):
            E(f'global_load_dwordx4 v[{32 + 4 * i}:{35 + 4 * i}], v{26 + i // 4}, s[18:19] offset:{(i % 4) * 1024}')
        for i in range(8):
            E(f's_waitcnt vmcnt({7 - i})')
            E(f'ds_write_b128 v25, v[{32 + 4 * i}:{35 + 4 * i}] offset:{(b * 8 + i) * STR}')
    barrier()
    E('v_lshrrev_b32 v26, 2, v1')
    E('v_lshl_add_u32 v26, v2, 2, v26')
    E(f'v_mul_u32_u24 v26, {STR}, v26')
    E('v_and_b32 v27, 3, v1')
    E('v_lshl_add_u32 v26, v27, 3, v26')
    E('s_lshl_b32 s24, s20, 8')
    E('v_add_u32 v26, s24, v26')
    E(f'v_add_u32 v27, {64 * STR}, v26')
    for ni in range(8):
        for ks in range(4):
            r = 128 + (ni * 4 + ks) * 4
            off = (ks % 2) * 32 * STR + ni * 32
            E(f'ds_read_b64_tr_b16 v[{r}:{r + 1}], v{26 + ks // 2} offset:{off}')
            E(f'ds_read_b64_tr_b16 v[{r + 2}:{r + 3}], v{26 + ks // 2} offset:{off + 16 * STR}')
    barrier()
    E('s_sub_u32 s61, s22, 3')
    E('s_mov_b32 s56, s61')
    E('s_lshl_b32 s52, s21, 2')
    E('s_add_u32 s52, s52, s20')
    team_consts()
    E('s_and_b32 s23, s20, 1')
    E('s_lshl_b32 s23, s23, 4')
    E('v_add_u32 v14, s23, v1')
    E('v_lshlrev_b32 v24, 2, v2')
    E('v_sub_u32 v14, v14, v24')
    E('v_lshrrev_b32 v24, 1, v2')
    E('v_cmp_eq_u32 s[46:47], s61, v24')
    E('s_lshl_b32 s23, s20, 12')
    E('v_add_u32 v20, s23, v7')
    grid_wait()
    E('s_mov_b32 s34, 1')
    a.flush()
    a.label('LB_item')
    stamp('s34', 0)
    E('s_sub_u32 s35, s34, 1')
    E('s_lshl_b32 s36, s35, 1')
    E('s_lshr_b32 s23, s20, 1')
    E('s_add_u32 s36, s36, s23')
    E(f's_mul_i32 s37, s61, {LAG}')
    E('s_add_u32 s37, s37, s36')
    E('s_lshl_b32 s38, s61, 6')
    E('s_add_u32 s38, s38, s36')
    E('s_lshl_b32 s23, s38, 9')
    E('s_lshl_b32 s24, s21, 4')
    E('s_add_u32 s23, s23, s24')
    E('s_lshl_b32 s25, s37, 9')
    E('s_add_u32 s25, s25, s24')
    E(f's_add_u32 s25, s25, {MEM_RDY}')
    E('v_mov_b32 v124, s23')
    E('v_mov_b32 v125, s25')
    L = poll_begin()
    E(f'global_load_dwordx4 v[24:27], v124, {WS} offset:{KV_RDY} sc1')
    E(f'global_load_dwordx4 v[28:31], v125, {WS} sc1')
    E('s_waitcnt vmcnt(0)')
    E('v_and_b32 v24, v24, v25')
    E('v_and_b32 v26, v26, v27')
    E('v_and_b32 v28, v28, v29')
    E('v_and_b32 v30, v30, v31')
    E('v_and_b32 v24, v24, v26')
    E('v_and_b32 v28, v28, v30')
    E('v_and_b32 v24, v24, v28')
    E('v_cmp_ne_u32 s[40:41], 1, v24')
    poll_end(L, 5)
    stamp('s34', 1)
    done_pre()
    E('s_lshl_b32 s23, s35, 16')
    E('v_add_u32 v124, s23, v13')
    Lr = a.newlabel('Lres')
    Lr2 = a.newlabel('Lres')
    E('s_cmp_eq_u32 s61, 0')
    E(f's_cbranch_scc0 {Lr}')
    E(f'global_load_dwordx2 v[22:23], v124, {XIN} sc1')
    E(f's_branch {Lr2}')
    a.label(Lr)
    E(f'v_add_u32 v125, {X2}, v124')
    E(f'global_load_dwordx2 v[22:23], v125, {WS} sc1')
    a.label(Lr2)
    E(f's_mul_i32 s23, s38, {32 * 24576}')
    E('s_mul_i32 s24, s21, 24576')
    E('s_add_u32 s23, s23, s24')
    E(f's_add_u32 s23, s23, {QKV}')
    E('v_add_u32 v124, s23, v7')
    E('s_and_b32 s24, s20, 1')
    E('s_lshl_b32 s24, s24, 12')
    E('v_add_u32 v125, s24, v124')
    for ks in range(4):
        E(f'global_load_dwordx4 v[{24 + 4 * ks}:{27 + 4 * ks}], v125, {WS} offset:{ks * 1024} sc1')
    for kt in range(2):
        E(f'v_add_u32 v125, {8192 + kt * 4096}, v124')
        for ks in range(4):
            r = 40 + 16 * kt + 4 * ks
            E(f'global_load_dwordx4 v[{r}:{r + 3}], v125, {WS} offset:{ks * 1024} sc1')
    E('s_lshl_b32 s23, s37, 5')
    E('s_add_u32 s23, s23, s21')
    E('s_lshl_b32 s23, s23, 13')
    E(f's_add_u32 s23, s23, {MEMKV}')
    E('v_add_u32 v126, s23, v7')
    for ks in range(4):
        E(f'global_load_dwordx4 v[{72 + 4 * ks}:{75 + 4 * ks}], v126, {WS} offset:{ks * 1024} sc1')
    for hb in range(2):
        E(f'v_add_u32 v125, {16384 + hb * 4096}, v124')
        for e in range(4):
            r = 16 * hb + 4 * e
            E(f'global_load_dwordx4 a[{r}:{r + 3}], v125, {WS} offset:{e * 1024} sc1')
    E('v_add_u32 v126, 4096, v126')
    for ks in range(4):
        E(f'global_load_dwordx4 a[{32 + 4 * ks}:{35 + 4 * ks}], v126, {WS} offset:{ks * 1024} sc1')
    E('s_waitcnt vmcnt(12)')
    for ks in range(4):
        q = f'v[{24 + 4 * ks}:{27 + 4 * ks}]'
        for kt in range(2):
            r = 40 + 16 * kt + 4 * ks
            d = 88 + 4 * kt
            E(f'v_mfma_f32_16x16x32_bf16 v[{d}:{d + 3}], v[{r}:{r + 3}], {q}, {f"v[{d}:{d + 3}]" if ks else 0}')
        E(f'v_mfma_f32_16x16x32_bf16 v[96:99], v[{72 + 4 * ks}:{75 + 4 * ks}], {q}, {"v[96:99]" if ks else 0}')
    E('v_mov_b32 v124, 0xf149f2ca')
    for kt in range(2):
        for r in range(4):
            E(f'v_cmp_le_i32 vcc, {16 * kt + r}, v14')
            E(f'v_cndmask_b32 v{88 + 4 * kt + r}, v124, v{88 + 4 * kt + r}, vcc')
    for k in range(4):
        E(f'v_cndmask_b32 v{96 + k}, v124, v{96 + k}, s[46:47]')
    softmax12(88, 124)
    for j in range(4):
        E(f'v_cvt_pk_bf16_f32 v{100 + j}, v{88 + 2 * j}, v{89 + 2 * j}')
    for j in range(2):
        E(f'v_cvt_pk_bf16_f32 v{104 + j}, v{96 + 2 * j}, v{97 + 2 * j}')
    E('s_waitcnt vmcnt(0)')
    for et in range(8):
        o = f'v[{24 + 4 * et}:{27 + 4 * et}]'
        E(f'v_mfma_f32_16x16x32_bf16 {o}, a[{4 * et}:{4 * et + 3}], v[100:103], 0')
    for et in range(8):
        o = f'v[{24 + 4 * et}:{27 + 4 * et}]'
        mr = 32 + 4 * (et // 2) + 2 * (et % 2)
        E(f'v_mfma_f32_16x16x16_bf16 {o}, a[{mr}:{mr + 1}], v[104:105], {o}')
    for ks in range(4):
        for T in range(2):
            for j in range(2):
                ar = 24 + 4 * (2 * ks + T) + 2 * j
                E(f'v_cvt_pk_bf16_f32 v{56 + 4 * ks + 2 * T + j}, v{ar}, v{ar + 1}')
        E(f'ds_write_b128 v20, v[{56 + 4 * ks}:{59 + 4 * ks}] offset:{ks * 1024}')
    barrier()
    for rt in range(4):
        for ks in range(4):
            r = 24 + 16 * rt + 4 * ks
            E(f'ds_read_b128 v[{r}:{r + 3}], v7 offset:{rt * 4096 + ks * 1024}')
    stamp('s34', 2)
    wait_done(6)
    stamp('s34', 3)
    E('s_waitcnt lgkmcnt(0)')
    for i in range(8):
        accs = [88 + 4 * rt for rt in range(4)]
        for ks in range(4):
            wr = 128 + (i * 4 + ks) * 4
            for rt in range(4):
                r = 24 + 16 * rt + 4 * ks
                ac = f'v[{accs[rt]}:{accs[rt] + 3}]'
                E(f'v_mfma_f32_16x16x32_bf16 {ac}, v[{wr}:{wr + 3}], v[{r}:{r + 3}], {ac if ks else 0}')
        partial_store(i, accs)
    stamp('s34', 4)
    publish_and_reduce(32, 7)
    stamp('s34', 5)
    E('s_lshl_b32 s23, s35, 16')
    E('v_add_u32 v124, s23, v13')
    final_store(X1, 's61', X1_RDY)
    stamp('s34', 6)
    E('s_add_u32 s34, s34, 1')
    E('s_cmp_le_u32 s34, 32')
    a.flush()
    E('s_cbranch_scc1 LB_item')
    E('s_waitcnt vmcnt(0)')
    E('s_endpgm')


def add_resid():
    for j in range(2):
        E(f'v_cvt_pk_bf16_f32 v{34 + j}, v{24 + 2 * j}, v{25 + 2 * j}')
    for j in range(2):
        E(f'v_lshlrev_b32 v{24 + 2 * j}, 16, v{34 + j}')
        E(f'v_and_b32 v{25 + 2 * j}, 0xffff0000, v{34 + j}')
        E(f'v_lshlrev_b32 v{28 + 2 * j}, 16, v{22 + j}')
        E(f'v_and_b32 v{29 + 2 * j}, 0xffff0000, v{22 + j}')
    for k in range(4):
        E(f'v_add_f32 v{24 + k}, v{24 + k}, v{28 + k}')
    for j in range(2):
        E(f'v_cvt_pk_bf16_f32 v{32 + j}, v{24 + 2 * j}, v{25 + 2 * j}')


def final_store(dst, lreg, rdy):
    add_resid()
    E(f's_lshl_b32 s23, {lreg}, 21')
    E(f's_add_u32 s23, s23, {dst}')
    E('v_add_u32 v125, s23, v124')
    E(f'global_store_dwordx2 v125, v[32:33], {WS} sc1')
    E('s_waitcnt vmcnt(0)')
    E(f's_lshl_b32 s23, {lreg}, 5')
    E('s_add_u32 s23, s23, s35')
    E('s_lshl_b32 s23, s23, 7')
    E('s_add_u32 s23, s23, s52')
    E('s_lshl_b32 s23, s23, 2')
    E(f's_add_u32 s23, s23, {rdy}')
    E('v_mov_b32 v124, s23')
    E('v_mov_b32 v125, 1')
    E(f'global_store_dword v124, v125, {WS} sc1')


def gen_F():
    a.label('LroleF')
    E(f's_load_dwordx2 s[12:13], s[0:1], {KA["wg"]}')
    E(f's_load_dwordx2 s[14:15], s[0:1], {KA["wu"]}')
    E(f's_load_dwordx2 s[16:17], s[0:1], {KA["wd"]}')
    E('s_waitcnt lgkmcnt(0)')
    lane_consts()
    E('s_sub_u32 s56, s22, 3')
    E('s_lshl_b32 s52, s21, 2')
    E('s_add_u32 s52, s52, s20')
    E('s_cmp_ge_u32 s21, 28')
    E('s_cbranch_scc1 LF_wdone')
    STR = 144
    UPO = 512 * STR
    E('v_lshrrev_b32 v24, 3, v0')
    E('s_lshl_b32 s23, s20, 7')
    E('v_add_u32 v24, s23, v24')
    E('v_and_b32 v25, 7, v0')
    E('s_movk_i32 s23, 3584')
    E('v_mul_lo_u32 v26, v24, s23')
    E('v_lshl_add_u32 v26, v25, 4, v26')
    E('s_lshl_b32 s23, s21, 7')
    E('v_add_u32 v26, s23, v26')
    E(f'v_mul_u32_u24 v27, {STR}, v24')
    E('v_lshl_add_u32 v27, v25, 4, v27')
    for mi, ptr in enumerate(('s[12:13]', 's[14:15]')):
        for b in range(2):
            for i in range(8):
                ii = b * 8 + i
                E(f'v_add_u32 v28, {ii * 8 * 3584}, v26')
                E(f'global_load_dwordx4 v[{32 + 4 * i}:{35 + 4 * i}], v28, {ptr}')
            for i in range(8):
                ii = b * 8 + i
                E(f's_waitcnt vmcnt({7 - i})')
                off = ii * 8 * STR
                if mi == 1:
                    E(f'v_add_u32 v28, {UPO}, v27')
                    E(f'ds_write_b128 v28, v[{32 + 4 * i}:{35 + 4 * i}] offset:{off}')
                else:
                    E(f'ds_write_b128 v27, v[{32 + 4 * i}:{35 + 4 * i}] offset:{off}')
    barrier()
    E('v_lshrrev_b32 v26, 2, v1')
    E('v_lshl_add_u32 v26, v2, 3, v26')
    E(f'v_mul_u32_u24 v26, {STR}, v26')
    E('v_and_b32 v27, 3, v1')
    E('v_lshl_add_u32 v26, v27, 3, v26')
    E('s_lshl_b32 s24, s20, 5')
    E('v_add_u32 v26, s24, v26')
    E(f'v_add_u32 v27, {8 * 32 * STR}, v26')
    E(f'v_add_u32 v28, {UPO}, v26')
    E(f'v_add_u32 v29, {UPO + 8 * 32 * STR}, v26')
    for mi in range(2):
        for ks in range(16):
            r = 64 * mi + 4 * ks
            base = 26 + 2 * mi + ks // 8
            off = (ks % 8) * 32 * STR
            E(f'ds_read_b64_tr_b16 a[{r}:{r + 1}], v{base} offset:{off}')
            E(f'ds_read_b64_tr_b16 a[{r + 2}:{r + 3}], v{base} offset:{off + 4 * STR}')
    barrier()
    STR = 1040
    E('s_lshl_b32 s23, s21, 16')
    E('s_lshl_b32 s24, s20, 14')
    E('s_add_u32 s23, s23, s24')
    E('v_add_u32 v24, s23, v7')
    E(f's_mul_i32 s24, s20, {16 * STR}')
    E('v_add_u32 v25, s24, v7')
    for b in range(2):
        E(f'v_add_u32 v26, {b * 8192}, v24')
        E(f'v_add_u32 v27, {b * 8192 + 4096}, v24')
        for i in range(8):
            E(f'global_load_dwordx4 v[{32 + 4 * i}:{35 + 4 * i}], v{26 + i // 4}, s[16:17] offset:{(i % 4) * 1024}')
        for i in range(8):
            E(f's_waitcnt vmcnt({7 - i})')
            E(f'ds_write_b128 v25, v[{32 + 4 * i}:{35 + 4 * i}] offset:{(b * 8 + i) * STR}')
    barrier()
    E('v_lshrrev_b32 v26, 2, v1')
    E('v_lshl_add_u32 v26, v2, 2, v26')
    E(f'v_mul_u32_u24 v26, {STR}, v26')
    E('v_and_b32 v27, 3, v1')
    E('v_lshl_add_u32 v26, v27, 3, v26')
    E('s_lshl_b32 s24, s20, 8')
    E('v_add_u32 v26, s24, v26')
    for ni in range(8):
        for k2 in range(2):
            r = 128 + (ni * 2 + k2) * 4
            off = k2 * 32 * STR + ni * 32
            E(f'ds_read_b64_tr_b16 v[{r}:{r + 1}], v26 offset:{off}')
            E(f'ds_read_b64_tr_b16 v[{r + 2}:{r + 3}], v26 offset:{off + 16 * STR}')
    E('s_waitcnt lgkmcnt(0)')
    a.label('LF_wdone')
    E('s_barrier')
    team_consts()
    XN = 0
    XH = 65536
    frag_bases(XN)
    E('v_lshlrev_b32 v21, 3, v0')
    E(f'v_add_u32 v21, {XH}, v21')
    E('s_lshl_b32 s23, s20, 11')
    E('v_add_u32 v20, s23, v21')
    E('s_mov_b32 s34, 1')
    grid_wait()
    table_ptr('Ltab_F', 5)
    a.flush()
    a.label('LF_item')
    E('s_lshl_b32 s23, s34, 2')
    E('s_sub_u32 s23, s23, 4')
    E('s_load_dword s31, s[54:55], s23')
    E('s_waitcnt lgkmcnt(0)')
    E('s_cmp_ge_u32 s31, 64')
    E('s_cbranch_scc1 LF_done')
    E('s_and_b32 s35, s31, 31')
    E('s_lshr_b32 s61, s31, 5')
    stamp('s34', 0)
    E('s_lshl_b32 s23, s61, 5')
    E('s_add_u32 s23, s23, s35')
    E('s_lshl_b32 s23, s23, 9')
    E(f's_add_u32 s23, s23, {X1_RDY}')
    E('v_lshlrev_b32 v124, 3, v0')
    E('v_add_u32 v124, s23, v124')
    L = poll_begin()
    E(f'global_load_dwordx2 v[24:25], v124, {WS} sc1')
    E('s_waitcnt vmcnt(0)')
    E('v_and_b32 v24, v24, v25')
    E('v_cmp_ne_u32 s[40:41], 1, v24')
    poll_end(L, 8)
    stamp('s34', 1)
    E('s_lshl_b32 s33, s61, 21')
    E('s_lshl_b32 s23, s35, 16')
    E('s_add_u32 s33, s33, s23')
    E(f's_add_u32 s33, s33, {X1}')
    E('v_add_u32 v125, s33, v13')
    E(f'global_load_dwordx2 v[22:23], v125, {WS} sc1')
    E('s_cmp_ge_u32 s21, 28')
    E('s_cbranch_scc1 LF_cons')
    done_pre()
    layernorm64(WS, 's33', XN)
    barrier()
    stamp('s34', 2)

    def rd(ks):
        for rt in range(4):
            r = 56 + 16 * (ks % 2) + 4 * rt
            E(f'ds_read_b128 v[{r}:{r + 3}], v{3 + ks % 4} offset:{rt * 16384 + (ks // 4) * 256}')
    rd(0)
    rd(1)
    for ks in range(16):
        E(f's_waitcnt lgkmcnt({4 if ks < 15 else 0})')
        for rt in range(4):
            r = 56 + 16 * (ks % 2) + 4 * rt
            for mi in range(2):
                ar = 24 + 16 * mi + 4 * rt
                acc = f'v[{ar}:{ar + 3}]'
                E(f'v_mfma_f32_16x16x32_bf16 {acc}, a[{64 * mi + 4 * ks}:{64 * mi + 4 * ks + 3}], v[{r}:{r + 3}], {acc if ks else 0}')
        if ks + 2 < 16:
            rd(ks + 2)
    E('s_mov_b32 s23, 0x3d372713')
    E('s_mov_b32 s24, 0xc0135761')
    for k in range(0, 16, 2):
        E(f'v_cvt_pk_bf16_f32 v56, v{24 + k}, v{25 + k}')
        E(f'v_cvt_pk_bf16_f32 v57, v{40 + k}, v{41 + k}')
        E(f'v_lshlrev_b32 v{24 + k}, 16, v56')
        E(f'v_and_b32 v{25 + k}, 0xffff0000, v56')
        E(f'v_lshlrev_b32 v{40 + k}, 16, v57')
        E(f'v_and_b32 v{41 + k}, 0xffff0000, v57')
    for k in range(16):
        g = 24 + k
        t = 56 + k
        E(f'v_mul_f32 v{t}, v{g}, v{g}')
        E(f'v_mul_f32 v{t}, s23, v{t}')
        E(f'v_fma_f32 v{t}, v{t}, v{g}, v{g}')
        E(f'v_mul_f32 v{t}, s24, v{t}')
    for k in range(16):
        E(f'v_exp_f32 v{56 + k}, v{56 + k}')
    for k in range(16):
        E(f'v_add_f32 v{56 + k}, 1.0, v{56 + k}')
    for k in range(16):
        E(f'v_rcp_f32 v{56 + k}, v{56 + k}')
    for k in range(16):
        E(f'v_mul_f32 v{24 + k}, v{24 + k}, v{56 + k}')
    for k in range(0, 16, 2):
        E(f'v_cvt_pk_bf16_f32 v56, v{24 + k}, v{25 + k}')
        E(f'v_lshlrev_b32 v{24 + k}, 16, v56')
        E(f'v_and_b32 v{25 + k}, 0xffff0000, v56')
    for k in range(16):
        E(f'v_mul_f32 v{24 + k}, v{24 + k}, v{40 + k}')
    for rt in range(4):
        for j in range(2):
            E(f'v_cvt_pk_bf16_f32 v{56 + 2 * rt + j}, v{24 + 4 * rt + 2 * j}, v{25 + 4 * rt + 2 * j}')
        E(f'ds_write_b64 v20, v[{56 + 2 * rt}:{57 + 2 * rt}] offset:{rt * 512}')
    barrier()
    for rt in range(4):
        for k2 in range(2):
            r = 24 + 8 * rt + 4 * k2
            E(f'ds_read_b64 v[{r}:{r + 1}], v21 offset:{(2 * k2) * 2048 + rt * 512}')
            E(f'ds_read_b64 v[{r + 2}:{r + 3}], v21 offset:{(2 * k2 + 1) * 2048 + rt * 512}')
    stamp('s34', 3)
    wait_done(9)
    E('s_waitcnt lgkmcnt(0)')
    for i in range(8):
        accs = [88 + 4 * rt for rt in range(4)]
        for k2 in range(2):
            wr = 128 + (i * 2 + k2) * 4
            for rt in range(4):
                r = 24 + 8 * rt + 4 * k2
                ac = f'v[{accs[rt]}:{accs[rt] + 3}]'
                E(f'v_mfma_f32_16x16x32_bf16 {ac}, v[{wr}:{wr + 3}], v[{r}:{r + 3}], {ac if k2 else 0}')
        partial_store(i, accs)
    stamp('s34', 4)
    publish_and_reduce(28, 10, 'LF_cons')
    stamp('s34', 5)
    E('s_lshl_b32 s23, s35, 16')
    E('v_add_u32 v124, s23, v13')
    add_resid()
    Lo = a.newlabel('Lfo')
    Lo2 = a.newlabel('Lfo')
    E('s_cmp_eq_u32 s61, 0')
    E(f's_cbranch_scc0 {Lo}')
    E(f'v_add_u32 v125, {X2}, v124')
    E(f'global_store_dwordx2 v125, v[32:33], {WS} sc1')
    E('s_waitcnt vmcnt(0)')
    E('s_lshl_b32 s23, s35, 7')
    E('s_add_u32 s23, s23, s52')
    E('s_lshl_b32 s23, s23, 2')
    E(f's_add_u32 s23, s23, {X2_RDY}')
    E('v_mov_b32 v124, s23')
    E('v_mov_b32 v125, 1')
    E(f'global_store_dword v124, v125, {WS} sc1')
    E(f's_branch {Lo2}')
    a.label(Lo)
    E(f'global_store_dwordx2 v124, v[32:33], {OUT}')
    a.label(Lo2)
    E('s_add_u32 s34, s34, 1')
    a.flush()
    E('s_branch LF_item')
    a.label('LF_done')
    stamp('s94', 5)
    E('s_waitcnt vmcnt(0)')
    E('s_endpgm')


def gen_mega():
    a.lines.append('.globl mega_kernel\n.p2align 8\n.type mega_kernel,@function\nmega_kernel:')
    E('s_cmp_ge_u32 s2, 256')
    E('s_cbranch_scc1 Lmega_exit')
    E(f's_load_dwordx2 s[4:5], s[0:1], {KA["ws"]}')
    E(f's_load_dwordx2 s[6:7], s[0:1], {KA["x"]}')
    E(f's_load_dwordx2 s[8:9], s[0:1], {KA["out"]}')
    E(f's_load_dwordx2 s[10:11], s[0:1], {KA["dbg"]}')
    E('v_lshrrev_b32 v1, 6, v0')
    E('v_readfirstlane_b32 s20, v1')
    E('v_and_b32 v0, 63, v0')
    E('s_getreg_b32 s22, hwreg(HW_REG_XCC_ID)')
    E('s_and_b32 s22, s22, 7')
    E('s_waitcnt lgkmcnt(0)')
    E('s_cmp_lg_u32 s20, 0')
    E('s_cbranch_scc1 Lticket_skip')
    E('s_mov_b64 exec, 1')
    E('s_lshl_b32 s23, s22, 2')
    E('v_mov_b32 v2, s23')
    E('v_mov_b32 v3, 1')
    E(f'global_atomic_add v4, v2, v3, {DBG} sc0 sc1')
    E('v_mov_b32 v5, 0')
    E('s_waitcnt vmcnt(0)')
    E('ds_write_b32 v5, v4')
    E('s_mov_b64 exec, -1')
    a.label('Lticket_skip')
    barrier()
    E('v_mov_b32 v5, 0')
    E('ds_read_b32 v4, v5')
    E('s_waitcnt lgkmcnt(0)')
    E('v_readfirstlane_b32 s21, v4')
    E('s_barrier')
    E('s_cmp_ge_u32 s21, 32')
    E('s_cbranch_scc1 Lmega_exit')
    E('s_mov_b32 s94, 100')
    lane_consts()
    ZSH = ZERO_END // 256
    E(f's_mul_i32 s23, s2, {ZSH}')
    E('s_lshl_b32 s24, s20, 10')
    E('s_add_u32 s23, s23, s24')
    E('v_add_u32 v24, s23, v7')
    for k in range(4):
        E(f'v_mov_b32 v{28 + k}, 0')
    E(f'global_store_dwordx4 v24, v[28:31], {WS} sc1')
    E('s_cmp_lg_u32 s20, 0')
    E('s_cbranch_scc1 Lz_skip')
    E('v_add_u32 v24, 4096, v24')
    E(f'global_store_dwordx4 v24, v[28:31], {WS} sc1')
    a.label('Lz_skip')
    E('s_waitcnt vmcnt(0)')
    E('s_barrier')
    E('s_cmp_lg_u32 s20, 0')
    E('s_cbranch_scc1 Lz_skip2')
    E('s_mov_b64 exec, 1')
    E('v_mov_b32 v24, 32')
    E('v_mov_b32 v25, 1')
    E(f'global_atomic_add v24, v25, {DBG} sc1')
    E('s_mov_b64 exec, -1')
    a.label('Lz_skip2')
    stamp('s94', 0)
    E('s_cmp_eq_u32 s22, 0')
    E('s_cbranch_scc1 Lchain')
    E('s_cmp_le_u32 s22, 2')
    E('s_cbranch_scc1 LroleA')
    E('s_cmp_le_u32 s22, 4')
    E('s_cbranch_scc1 LroleB')
    E('s_branch LroleF')
    a.label('Lmega_exit')
    E('s_endpgm')
    gen_chain()
    tabs = gen_A()
    gen_B()
    gen_F()
    a.lines.append('.p2align 6')
    a.lines.append('Ltab_A:')
    for t in tabs:
        t = t + [255] * (64 - len(t))
        a.lines.append('.long ' + ', '.join(str(x) for x in t))
    a.lines.append('Ltab_F:')
    for t in make_tables(3, 0, 0):
        t = t + [255] * (64 - len(t))
        a.lines.append('.long ' + ', '.join(str(x) for x in t))


HEADER = open('interleave_layers__memory_aug_recurrent_mem_tr__geglu_ffn__prompt.s.ref').read().split('; Override launch')[0]

nwg_init = ZERO_END // 4096
out = HEADER
out += '; @launch kernel=mega_kernel grid=(256,1,1) block=(256,1,1) lds=163840\n'
out += '.amdgcn_target "amdgcn-amd-amdhsa--gfx950"\n.text\n'
gen_mega()
out += a.text()
out += '''.section .rodata,"a"
.p2align 6
.amdhsa_kernel mega_kernel
  .amdhsa_next_free_vgpr 512
  .amdhsa_next_free_sgpr 102
  .amdhsa_accum_offset 256
  .amdhsa_group_segment_fixed_size 0
  .amdhsa_kernarg_size 112
  .amdhsa_user_sgpr_count 2
  .amdhsa_user_sgpr_kernarg_segment_ptr 1
  .amdhsa_system_sgpr_workgroup_id_x 1
.end_amdhsa_kernel
'''
open(sys.argv[1], 'w').write(out)
print('instructions:', a.ninstr, 'bytes:', len(out))
```
